```python
import torch

def _softmax(x, axis=-1):
    return torch.softmax(x, dim=axis)
def _gelu(x):
    return torch.nn.functional.gelu(x, approximate="tanh")
def _silu(x):
    return torch.nn.functional.silu(x)
def _sigmoid(x):
    return torch.sigmoid(x)
def _layernorm(x, axis=-1, eps=1e-5):
    m = x.mean(dim=axis, keepdim=True)
    v = x.var(dim=axis, keepdim=True, unbiased=False)
    return (x - m) / torch.sqrt(v + eps)
def _scatter_add(tgt, idx, src, axis=0):
    return tgt.clone().index_add_(axis, idx, src)
def _segment_sum(src, seg, n):
    out = torch.zeros((n,) + src.shape[1:], dtype=src.dtype)
    return out.index_add_(0, seg, src)
def _pad(x, pw):
    flat = tuple(v for pair in reversed(pw) for v in pair)
    return torch.nn.functional.pad(x, flat)

kernel_name = 'interleave_layers__mha_block__mixer_channel_mlp__prompt'

def setup_inputs():

    _w = (lambda a: (lambda t: t.to(torch.bfloat16) if t.is_floating_point() else t)(torch.as_tensor(a)))
    def _A_setup():
        B, S, D, H = 1, 2048, 640, 32
        return {
            "x": _w((lambda *s: torch.randn(*s, dtype=torch.bfloat16) * 0.05)(B, S, D)),
            "wqkv": _w((lambda *s: torch.randn(*s, dtype=torch.bfloat16) * 0.05)(D, 3 * D)),
            "wo": _w((lambda *s: torch.randn(*s, dtype=torch.bfloat16) * 0.05)(D, D)),
        }
    _A_in = _A_setup()

    def _B_setup():
        B, S, D, F = 1, 2048, 640, 1536
        return {
            "x": _w((lambda *s: torch.randn(*s, dtype=torch.bfloat16) * 0.05)(B, S, D)),
            "w1": _w((lambda *s: torch.randn(*s, dtype=torch.bfloat16) * 3.2)(D, F) * (D ** -0.5)),
            "b1": _w((lambda *s: torch.randn(*s, dtype=torch.bfloat16) * 0.8)(F)),
            "w2": _w((lambda *s: torch.randn(*s, dtype=torch.bfloat16) * 0.4)(F, D) * (F ** -0.5)),
            "b2": _w((lambda *s: torch.randn(*s, dtype=torch.bfloat16) * 0.4)(D)),
        }
    _B_in = _B_setup()

    return {
        "A_x": _A_in["x"],
        "A_wqkv": _A_in["wqkv"],
        "A_wo": _A_in["wo"],
        "B_x": _B_in["x"],
        "B_w1": _B_in["w1"],
        "B_b1": _B_in["b1"],
        "B_w2": _B_in["w2"],
        "B_b2": _B_in["b2"],
    }

def reference(A_x, A_wqkv, A_wo, B_x, B_w1, B_b1, B_w2, B_b2):
    def _A_ref(x, wqkv, wo):
        B, S, D = x.shape
        H = 32
        Dh = D // H
        qkv = (lambda x, *d: x.permute(*d))((x @ wqkv).reshape(B, S, 3, H, Dh), 2, 0, 3, 1, 4)
        q, k, v = qkv[0], qkv[1], qkv[2]
        scores = torch.einsum("bhqd,bhkd->bhqk", q, k) * (Dh ** -0.5)
        p = _softmax(scores, axis=-1)
        o = torch.einsum("bhqk,bhkd->bhqd", p, v)
        return (lambda x, *d: x.permute(*d))(o, 0, 2, 1, 3).reshape(B, S, D) @ wo

    def _B_ref(x, w1, b1, w2, b2):
        y = _layernorm(x, axis=-1)
        h = _gelu(torch.einsum("bsd,df->bsf", y, w1) + b1)
        return torch.einsum("bsf,fd->bsd", h, w2) + b2

    x = A_x
    x = x + _A_ref(_layernorm(x, axis=-1), A_wqkv, A_wo)
    x = x + _B_ref(_layernorm(x, axis=-1), B_w1, B_b1, B_w2, B_b2)
    x = x + _A_ref(_layernorm(x, axis=-1), A_wqkv, A_wo)
    x = x + _B_ref(_layernorm(x, axis=-1), B_w1, B_b1, B_w2, B_b2)
    return x
```

```python
import re

def vr(a, n=1):
    return f"v{a}" if n == 1 else f"v[{a}:{a+n-1}]"
def sr(a, n=1):
    return f"s{a}" if n == 1 else f"s[{a}:{a+n-1}]"
def ar(a, n=1):
    return f"a{a}" if n == 1 else f"a[{a}:{a+n-1}]"

TRANS = ("v_exp_f32", "v_rcp_f32", "v_rsq_f32", "v_log_f32", "v_sqrt_f32", "v_exp_f16", "v_rcp_f16", "v_sin_f32", "v_cos_f32")

def parse_regs(tok):
    t = tok.strip()
    t = t.lstrip("-")
    if t.startswith("abs(") and t.endswith(")"): t = t[4:-1]
    if t.startswith("|") and t.endswith("|"): t = t[1:-1]
    m = re.fullmatch(r"([vsa])(\d+)", t)
    if m: return {(m.group(1), int(m.group(2)))}
    m = re.fullmatch(r"([vsa])\[(\d+):(\d+)\]", t)
    if m: return {(m.group(1), i) for i in range(int(m.group(2)), int(m.group(3)) + 1)}
    if t in ("vcc", "vcc_lo", "vcc_hi"): return {("vcc", 0)}
    if t == "m0": return {("m0", 0)}
    if t in ("exec", "exec_lo", "exec_hi"): return {("exec", 0)}
    return set()

class Ins:
    __slots__ = ("text", "op", "kind", "wr", "rd", "passes", "srcc", "ab", "nstates", "label", "target", "mods")
    def __init__(self, text):
        self.text = text
        self.label = None; self.target = None
        t = text.split(";")[0].strip()
        self.wr = set(); self.rd = set(); self.passes = 0; self.srcc = set(); self.ab = set(); self.nstates = 1
        if t.endswith(":") and " " not in t:
            self.kind = "label"; self.label = t[:-1]; self.op = ""; self.nstates = 0; return
        if t == "" or t.startswith("."):
            self.kind = "none"; self.op = ""; self.nstates = 0; return
        parts = t.split(None, 1)
        op = parts[0]; self.op = op
        rest = parts[1] if len(parts) > 1 else ""
        ops = []; cur = ""; d = 0
        for ch in rest:
            if ch == "[": d += 1
            if ch == "]": d -= 1
            if ch == "," and d == 0: ops.append(cur.strip()); cur = ""
            else: cur += ch
        if cur.strip(): ops.append(cur.strip())
        toks = []; mods = []
        for i, o in enumerate(ops):
            sp = o.split()
            toks.append(sp[0]); mods += sp[1:]
        self.mods = mods
        R = [parse_regs(x) for x in toks]
        U = lambda l: set().union(*l) if l else set()
        if op.startswith("v_mfma"):
            self.kind = "mfma"
            self.passes = 8 if "32x32" in op else 4
            if "32x32x4" in op: self.passes = 16
            self.wr = R[0]; self.ab = R[1] | R[2]; self.srcc = R[3]; self.rd = self.ab | self.srcc
        elif op.startswith("v_cmp"):
            self.kind = "valu"; self.wr = R[0]; self.rd = U(R[1:])
        elif op in ("v_readfirstlane_b32", "v_readlane_b32"):
            self.kind = "valu"; self.wr = R[0]; self.rd = U(R[1:])
        elif op.startswith("v_permlane") and "swap" in op:
            self.kind = "valu"; self.wr = R[0] | R[1]; self.rd = R[0] | R[1]
        elif op.startswith("v_"):
            self.kind = "valu"; self.wr = R[0]; self.rd = U(R[1:])
            if op.startswith(("v_fmac", "v_dot2c", "v_mac")): self.rd |= R[0]
            if op.startswith("v_cndmask") and len(toks) == 3: self.rd |= {("vcc", 0)}
            if op.startswith(("v_add_co", "v_sub_co", "v_addc_co", "v_subb_co")): self.wr |= R[1]; self.rd = U(R[2:])
            if "sdwa" in op and any("UNUSED_PRESERVE" in m for m in mods): self.rd |= R[0]
        elif op.startswith("ds_read") or op.startswith("ds_bpermute") or op.startswith("ds_swizzle"):
            self.kind = "ds"; self.wr = R[0]; self.rd = U(R[1:])
        elif op.startswith("ds_"):
            self.kind = "ds"; self.rd = U(R)
        elif op.startswith(("buffer_load", "global_load")):
            self.kind = "vmem"
            if "lds" in mods or "_lds_" in op:
                self.rd = U(R) | {("m0", 0)}; self.kind = "vmem_lds"
            else:
                self.wr = R[0]; self.rd = U(R[1:])
        elif op.startswith(("buffer_store", "global_store", "buffer_atomic", "global_atomic")):
            self.kind = "vmem"; self.rd = U(R)
            if op.startswith("buffer_store"): self.srcc = R[0]
            elif op.startswith("global_store"): self.srcc = R[1]
        elif op == "s_nop":
            self.kind = "salu"; self.nstates = int(toks[0]) + 1
        elif op.startswith("s_cbranch") or op == "s_branch":
            self.kind = "branch"; self.target = toks[0]
        elif op.startswith("s_cmp") or op in ("s_waitcnt", "s_barrier", "s_endpgm", "s_setprio", "s_sleep"):
            self.kind = "salu"; self.rd = U(R)
        elif op.startswith("s_"):
            self.kind = "salu"; self.wr = R[0] if R else set(); self.rd = U(R[1:])
            if "saveexec" in op: self.wr |= {("exec", 0)}
        else:
            raise ValueError("unknown instruction: " + text)

def need(p, c):
    n = 0
    vin = lambda s: {r for r in s if r[0] in ("v", "a")}
    sin = lambda s: {r for r in s if r[0] in ("s", "vcc")}
    if p.kind == "valu":
        w = vin(p.wr)
        if c.kind == "mfma" and (w & c.rd): n = max(n, 2)
        if c.kind == "valu":
            if p.op.startswith(TRANS) and not c.op.startswith(TRANS) and (w & (c.rd | set())): n = max(n, 1)
            if p.op.startswith(TRANS) and c.op.startswith(TRANS) and (w & c.rd): n = max(n, 1)
            if c.op.startswith("v_permlane") and (w & c.rd): n = max(n, 2)
            if ("dpp" in c.op or any(m.startswith(("row_", "quad_perm", "wave_")) for m in c.mods)) and (w & c.rd): n = max(n, 2)
            if c.op in ("v_readfirstlane_b32", "v_readlane_b32") and (w & c.rd): n = max(n, 1)
            if ("sdwa" in p.op or any("op_sel" in m for m in p.mods)) and (w & (c.rd | c.wr)): n = max(n, 1)
        if p.op.startswith("v_dot") and (w & (c.rd | c.wr)):
            if not (c.op == p.op and (w & c.wr) == w and len([1 for r in w if r in c.rd]) and c.text.split(",")[0].split()[-1] == p.text.split(",")[0].split()[-1] and p.text.split(",")[0].split()[-1] not in [x.strip() for x in c.text.split(";")[0].split(",")[1:]]):
                n = max(n, 3)
        ws = sin(p.wr)
        if ws:
            if c.kind == "valu" and (ws & c.rd): n = max(n, 4 if c.op.startswith(("v_readlane", "v_writelane")) else 2)
            if c.kind in ("vmem", "vmem_lds") and (ws & c.rd): n = max(n, 5)
    if p.kind == "mfma":
        big = {4: 8, 8: 12, 16: 20}[p.passes]
        if c.kind == "valu" and (p.wr & (c.rd | c.wr)): n = max(n, big)
        if c.kind in ("vmem", "ds", "vmem_lds") and (p.wr & (c.rd | c.wr)): n = max(n, big)
        if c.kind == "mfma":
            if p.wr & c.ab: n = max(n, big)
            if p.wr & c.srcc:
                if not (p.wr == c.srcc and p.passes == c.passes): n = max(n, big - 2)
            elif (p.wr & c.wr) and p.wr != c.wr: n = max(n, big)
        if c.kind == "valu" and (p.srcc & c.wr): n = max(n, {4: 3, 8: 7, 16: 15}[p.passes])
    if p.kind == "salu" and ("m0", 0) in p.wr and c.kind == "vmem_lds": n = max(n, 1)
    if p.kind == "vmem" and p.srcc and len(p.srcc) >= 3:
        if c.kind == "valu" and (p.srcc & c.wr): n = max(n, 2)
        elif (p.srcc & c.wr): n = max(n, 1)
    return n

WIN = 22

class Asm:
    def __init__(self):
        self.I = []
    def __call__(self, text):
        for line in text.split("\n"):
            line = line.strip()
            if line: self.I.append(Ins(line))
    def lab(self, name): self.I.append(Ins(name + ":"))
    def raw(self, text):
        x = Ins(""); x.text = text; self.I.append(x)

    def pad(self):
        out = []; npad = 0
        for c in self.I:
            if c.kind in ("label", "none"):
                out.append(c); continue
            req = 0; dist = 0
            for p in reversed(out[-60:]):
                if p.kind in ("label", "none"): continue
                if p.op in ("s_endpgm", "s_branch"): break
                k = need(p, c)
                if k > dist: req = max(req, k - dist)
                dist += p.nstates
                if dist > WIN: break
            while req > 0:
                k = min(req, 8)
                out.append(Ins(f"s_nop {k-1}")); req -= k; npad += 1
            out.append(c)
        self.I = out
        pos = {x.label: i for i, x in enumerate(out) if x.kind == "label"}
        errs = []
        for i, b in enumerate(out):
            if b.kind != "branch" or b.target not in pos: continue
            hist = [x for x in out[max(0, i - 60):i + 1] if x.kind not in ("label", "none")]
            fut = [x for x in out[pos[b.target]:pos[b.target] + 60] if x.kind not in ("label", "none")]
            d_f = 0
            for c in fut:
                dist = d_f
                for p in reversed(hist):
                    k = need(p, c)
                    if k > dist: errs.append(f"edge hazard at branch {b.text} -> {b.target}: {p.text}  =>  {c.text} (need {k}, have {dist})")
                    dist += p.nstates
                    if dist > WIN: break
                d_f += c.nstates
                if d_f > WIN or c.op in ("s_endpgm", "s_branch"): break
        if errs: raise RuntimeError("\n".join(errs))
        return npad

    def text(self):
        o = []
        for x in self.I:
            if x.kind == "label": o.append(x.text)
            elif x.kind == "none": o.append(x.text)
            else: o.append("    " + x.text)
        return "\n".join(o) + "\n"
```

```python
from asmlib import *

NAME = "interleave_layers__mha_block__mixer_channel_mlp__prompt"
S, D, H, DH, F = 2048, 640, 32, 20, 1536
BLK = 40960
BLKH = 98304

def _al(x, a=4096): return (x + a - 1) // a * a
WT_QKV = 0
WT_O   = WT_QKV + 60 * BLK
WT_1   = WT_O + 20 * BLK
WT_2   = WT_1 + 48 * BLK
CS_QKV = WT_2 + 20 * BLKH
CS_1   = CS_QKV + 7680
XA     = _al(CS_1 + 6144)
XB     = XA + 64 * BLK
STA    = XB + 64 * BLK
STB    = STA + 2048 * 64
QB     = STB + 2048 * 64
KB     = QB + 64 * BLK
VB     = _al(KB + 70 * BLK)
VB_SZ  = 32 * 128 * 672
OB     = _al(VB + VB_SZ + 16 * 672)
HB     = OB + 64 * BLK
WS_END = HB + 64 * BLKH
WS_BYTES = 0x10000000

KA_X, KA_WQKV, KA_WO, KA_BX, KA_W1, KA_B1, KA_W2, KA_B2, KA_OUT, KA_DBG, KA_WS = [8 * i for i in range(11)]

QSCALE = (20 ** -0.5) * 1.4426950408889634

import struct
def f2u(x): return struct.unpack("<I", struct.pack("<f", x))[0]
def fhex(x): return "0x%08x" % f2u(x)

def srd(a, d, base, nbytes):
    if d != base:
        a(f"s_mov_b32 s{d}, s{base}")
        a(f"s_mov_b32 s{d+1}, s{base+1}")
    a(f"s_mov_b32 s{d+2}, {hex(nbytes)}")
    a(f"s_mov_b32 s{d+3}, 0x00020000")

def kernel_text(name, a, vgpr, sgpr=96):
    n = a.pad()
    t = f".globl {name}\n.p2align 8\n.type {name},@function\n{name}:\n" + a.text()
    return t

def descriptor(name, vgpr, sgpr=96, acc=None):
    if acc is None: acc = min(256, (vgpr + 3) // 4 * 4)
    return f""".amdhsa_kernel {name}
  .amdhsa_next_free_vgpr {vgpr}
  .amdhsa_next_free_sgpr {sgpr}
  .amdhsa_accum_offset {acc}
  .amdhsa_group_segment_fixed_size 0
  .amdhsa_kernarg_size 88
  .amdhsa_user_sgpr_count 2
  .amdhsa_user_sgpr_kernarg_segment_ptr 1
  .amdhsa_system_sgpr_workgroup_id_x 1
.end_amdhsa_kernel
"""
```

```python
from common import *

Q0 = [8, 16]; Q1 = [12, 20]
SS = [24, 40]; PP = [56, 64]; OO = [72, 88]
RING = 104
def K0(r): return RING + 16*r
def K1(r): return RING + 16*r + 4
def V0(r): return RING + 16*r + 8
def V1(r): return RING + 16*r + 12
def R4(x): return f"v[{x}:{x+3}]"
def R16(x): return f"v[{x}:{x+15}]"

def m_s(a, x, r, part):
    if part == 0:
        a(f"v_mfma_f32_32x32x16_bf16 {R16(SS[x])}, {R4(K0(r))}, {R4(Q0[x])}, 0")
    else:
        a(f"v_mfma_f32_32x32x16_bf16 {R16(SS[x])}, {R4(K1(r))}, {R4(Q1[x])}, {R16(SS[x])}")

def m_pv(a, x, r, part):
    v = V0(r) if part == 0 else V1(r)
    a(f"v_mfma_f32_32x32x16_bf16 {R16(OO[x])}, {R4(v)}, {R4(PP[x] + 4*part)}, {R16(OO[x])}")

def valu_seq(x):
    s = SS[x]; p = PP[x]
    seq = []
    e = lambda q: seq.append(f"v_exp_f32 v{s+q}, v{s+q}")
    c = lambda q: seq.append(f"v_cvt_pk_bf16_f32 v{p+q}, v{s+2*q}, v{s+2*q+1}")
    e(0); e(1); e(2); e(3); c(0); c(1)
    for g in range(1, 4):
        e(4*g); e(4*g+1); e(4*g+2); e(4*g+3); c(2*g); c(2*g+1)
    return seq

def loads(r):
    return [
        f"buffer_load_dwordx4 {R4(K0(r))}, v2, s[4:7], s15 offen",
        f"buffer_load_dwordx2 v[{K1(r)}:{K1(r)+1}], v3, s[4:7], s15 offen",
        f"buffer_load_dwordx4 {R4(V0(r))}, v4, s[4:7], s16 offen",
        f"buffer_load_dwordx4 {R4(V1(r))}, v4, s[4:7], s16 offen offset:672",
    ]

def phase(a, xv, xm, r, extra):
    seq = valu_seq(xv)
    ms = [lambda: m_s(a, xm, r, 0), lambda: m_s(a, xm, r, 1), lambda: m_pv(a, xm, r, 0), lambda: m_pv(a, xm, r, 1)]
    for g in range(4):
        ms[g]()
        for t in extra[g]: a(t)
        for t in seq[6*g:6*g+6]: a(t)

def setm(a, x, mreg):
    a(f"v_sub_f32 v{mreg}, 0, v{mreg}")
    a(f"v_cvt_pk_bf16_f32 v{mreg}, v{mreg}, 0")
    a(f"v_and_b32 v{mreg}, 0xffff, v{mreg}")
    a("s_mov_b32 exec_hi, 0")
    a(f"v_mov_b32 v{Q1[x]+2}, v{mreg}")
    a("s_mov_b32 exec_hi, -1")

def halfmax(a, reg, tmp):
    a(f"v_mov_b32 v{tmp}, v{reg}")
    a(f"v_permlane32_swap_b32 v{reg}, v{tmp}")
    a(f"v_max_f32 v{reg}, v{reg}, v{tmp}")

def gen_att():
    a = Asm()
    a("s_cmp_ge_u32 s2, 256")
    a("s_cbranch_scc1 ATT_end")
    a("s_load_dwordx2 s[4:5], s[0:1], 80")
    a("v_lshrrev_b32 v1, 6, v0")
    a("v_readfirstlane_b32 s12, v1")
    a("v_and_b32 v1, 63, v0")
    a(f"s_mov_b32 s6, {hex(WS_BYTES)}")
    a("s_mov_b32 s7, 0x00020000")
    a("s_and_b32 s13, s2, 7")
    a("s_lshl_b32 s13, s13, 2")
    a("s_lshr_b32 s14, s2, 3")
    a("s_and_b32 s17, s14, 3")
    a("s_add_u32 s13, s13, s17")
    a("s_lshr_b32 s14, s2, 5")
    a("s_lshr_b32 s17, s13, 1")
    a("s_and_b32 s18, s13, 1")
    a("s_mul_i32 s17, s17, 5")
    a("s_mul_i32 s19, s18, 3")
    a("s_add_u32 s19, s19, s17")
    a("s_lshl_b32 s19, s19, 9")
    a("s_add_u32 s17, s17, 2")
    a("s_lshl_b32 s17, s17, 9")
    a("s_lshl_b32 s18, s18, 3")
    a("s_add_u32 s17, s17, s18")
    a("v_lshlrev_b32 v2, 4, v1")
    a("v_add_u32 v2, s19, v2")
    a("v_and_b32 v5, 31, v1")
    a("v_lshlrev_b32 v3, 4, v5")
    a("v_add_u32 v3, s17, v3")
    a("v_min_u32 v5, 20, v5")
    a("v_lshlrev_b32 v5, 4, v5")
    a("v_lshrrev_b32 v4, 5, v1")
    a("v_mul_u32_u24 v4, 336, v4")
    a("v_add_u32 v4, v4, v5")
    a("s_lshl_b32 s22, s14, 3")
    a("s_lshl_b32 s17, s12, 1")
    a("s_add_u32 s22, s22, s17")
    a(f"s_mul_i32 s22, s22, {BLK}")
    a(f"s_add_u32 s24, s22, {OB}")
    a(f"s_add_u32 s25, s24, {BLK}")
    a(f"s_add_u32 s22, s22, {QB}")
    a(f"s_add_u32 s23, s22, {BLK}")
    a(f"s_mul_i32 s26, s13, {128*672}")
    a(f"s_add_u32 s26, s26, {VB}")
    for x in range(2):
        for q in range(4): a(f"v_mov_b32 v{Q1[x]+q}, 0")
    for r in range(4):
        a(f"v_mov_b32 v{K1(r)+2}, 0x3f803f80")
        a(f"v_mov_b32 v{K1(r)+3}, 0")
    a("s_mov_b32 s21, 0")
    a("s_waitcnt lgkmcnt(0)")
    for x in range(2):
        a(f"buffer_load_dwordx4 {R4(Q0[x])}, v2, s[4:7], s{22+x} offen")
    a("s_mov_b32 exec_hi, 0")
    for x in range(2):
        a(f"buffer_load_dwordx2 v[{Q1[x]}:{Q1[x]+1}], v3, s[4:7], s{22+x} offen")
    a("s_mov_b32 exec_hi, -1")
    a.lab("ATT_start")
    a(f"s_mov_b32 s15, {KB}")
    a("s_mov_b32 s16, s26")
    l3 = loads(3)
    a(l3[0]); a(l3[1])
    a(f"s_add_u32 s15, s15, {BLK}")
    for r in range(3):
        for t in loads(r): a(t)
        a(f"s_add_u32 s15, s15, {BLK}")
        a("s_add_u32 s16, s16, 1344")
    a("s_waitcnt vmcnt(12)")
    a("s_cmp_lg_u32 s21, 0")
    a("s_cbranch_scc1 ATT_havem")
    for x in range(2):
        m_s(a, x, 3, 0); m_s(a, x, 3, 1)
    for x in range(2):
        s = SS[x]
        a(f"v_max3_f32 v{6+x}, v{s}, v{s+1}, v{s+2}")
        for q in range(3, 15, 2):
            a(f"v_max3_f32 v{6+x}, v{6+x}, v{s+q}, v{s+q+1}")
        a(f"v_max_f32 v{6+x}, v{6+x}, v{s+15}")
    for x in range(2):
        halfmax(a, 6+x, 5)
        setm(a, x, 6+x)
    a.lab("ATT_havem")
    a("s_nop 1")
    for x in range(2):
        m_s(a, x, 3, 0); m_s(a, x, 3, 1)
    for x in range(2):
        for q in range(16): a(f"v_mov_b32 v{OO[x]+q}, 0")
    for t in valu_seq(0): a(t)
    a("s_mov_b32 s20, 16")
    a.lab("ATT_loop")
    for r in range(4):
        L = loads((r + 3) % 4)
        a("s_waitcnt vmcnt(8)")
        phase(a, 1, 0, r, [[], [L[0]], [], [L[1], f"s_add_u32 s15, s15, {BLK}"]])
        phase(a, 0, 1, r, [[], [L[2]], [], [L[3], "s_add_u32 s16, s16, 1344"]])
    a("s_sub_u32 s20, s20, 1")
    a("s_cmp_lg_u32 s20, 0")
    a("s_cbranch_scc1 ATT_loop")
    a("s_nop 7"); a("s_nop 3")
    a(f"s_mov_b32 s17, {fhex(2.0**40)}")
    a(f"v_mov_b32 v5, s17")
    a(f"v_cmp_nlt_f32 s[18:19], v{OO[0]+12}, v5")
    a(f"v_cmp_nlt_f32 vcc, v{OO[1]+12}, v5")
    a("s_nop 3")
    a("s_or_b64 vcc, vcc, s[18:19]")
    a("s_cbranch_vccz ATT_fin")
    a("s_cmp_lg_u32 s21, 0")
    a("s_cbranch_scc1 ATT_fin")
    a("s_mov_b32 s21, 1")
    a("s_waitcnt vmcnt(0)")
    a("s_mov_b32 exec_hi, 0")
    for x in range(2): a(f"v_mov_b32 v{Q1[x]+2}, 0")
    a("s_mov_b32 exec_hi, -1")
    a(f"v_mov_b32 v6, {fhex(-3.0e38)}")
    a(f"v_mov_b32 v7, {fhex(-3.0e38)}")
    a(f"s_mov_b32 s15, {KB}")
    a("s_mov_b32 s20, 64")
    a.lab("ATT_fb")
    a(l3[0]); a(l3[1])
    a(f"s_add_u32 s15, s15, {BLK}")
    a("s_waitcnt vmcnt(0)")
    for x in range(2):
        m_s(a, x, 3, 0); m_s(a, x, 3, 1)
    for x in range(2):
        s = SS[x]
        for q in range(0, 16, 2):
            a(f"v_max3_f32 v{6+x}, v{6+x}, v{s+q}, v{s+q+1}")
    a("s_sub_u32 s20, s20, 1")
    a("s_cmp_lg_u32 s20, 0")
    a("s_cbranch_scc1 ATT_fb")
    for x in range(2):
        halfmax(a, 6+x, 5)
        setm(a, x, 6+x)
    a("s_branch ATT_start")
    a.lab("ATT_fin")
    for x in range(2):
        o = OO[x]
        a(f"v_rcp_f32 v{6+x}, v{o+12}")
    for x in range(2):
        o = OO[x]
        for q in range(12): a(f"v_mul_f32 v{o+q}, v{o+q}, v{6+x}")
    for x in range(2):
        o = OO[x]; t = 24 + 8*x
        for q in range(6): a(f"v_cvt_pk_bf16_f32 v{t+q}, v{o+2*q}, v{o+2*q+1}")
    for x in range(2):
        t = 24 + 8*x
        a(f"v_permlane32_swap_b32 v{t}, v{t+2}")
        a(f"v_permlane32_swap_b32 v{t+1}, v{t+3}")
    for x in range(2):
        t = 24 + 8*x
        a(f"buffer_store_dwordx4 v[{t}:{t+3}], v2, s[4:7], s{24+x} offen")
    a("s_mov_b32 exec_hi, 0")
    for x in range(2):
        t = 24 + 8*x
        a(f"buffer_store_dwordx2 v[{t+4}:{t+5}], v3, s[4:7], s{24+x} offen")
    a.lab("ATT_end")
    a("s_endpgm")
    return a
```

```python
from common import *

LST = 131072
G1_LDS = LST + 2048
ACC = 64
def acc(i, j): return ACC + (2*i + j) * 16
def frag(b, n): return 32 + 16*b + 4*n

def mfma(a, i, j, b):
    c = acc(i, j)
    a(f"v_mfma_f32_32x32x16_bf16 v[{c}:{c+15}], v[{frag(b,i)}:{frag(b,i)+3}], v[{frag(b,2+j)}:{frag(b,2+j)+3}], v[{c}:{c+15}]")

def rd(a, b, n, k):
    base = 2 if n < 2 else 3
    off = (n & 1) * 4096 + k * 1024
    r = frag(b, n)
    a(f"ds_read_b128 v[{r}:{r+3}], v{base} offset:{off}")

def consumer_stage(a, last):
    for k in range(4):
        b = k & 1; nb = b ^ 1
        a("s_waitcnt lgkmcnt(0)")
        if k < 3:
            mfma(a, 0, 0, b)
            rd(a, nb, 0, k+1); rd(a, nb, 2, k+1)
            mfma(a, 0, 1, b)
            rd(a, nb, 3, k+1); rd(a, nb, 1, k+1)
            mfma(a, 1, 0, b)
            mfma(a, 1, 1, b)
        elif not last:
            a("v_add_u32 v2, 0x8000, v2")
            a("v_add_u32 v3, 0x8000, v3")
            mfma(a, 0, 0, b)
            a("v_and_b32 v2, 0x1ffff, v2")
            a("v_and_b32 v3, 0x1ffff, v3")
            a("s_barrier")
            rd(a, nb, 0, 0); rd(a, nb, 2, 0)
            mfma(a, 0, 1, b)
            rd(a, nb, 3, 0); rd(a, nb, 1, 0)
            mfma(a, 1, 0, b)
            mfma(a, 1, 1, b)
        else:
            mfma(a, 0, 0, b); mfma(a, 0, 1, b); mfma(a, 1, 0, b); mfma(a, 1, 1, b)

def loader(a, kind, P):
    a.lab(f"{P}_loader")
    a("s_sub_u32 s17, s12, 4")
    a(f"s_mul_i32 s20, s17, {BLK}")
    a("s_add_u32 s18, s15, s20")
    a("s_add_u32 s19, s16, s20")
    a("s_lshl_b32 s20, s17, 12")
    a("v_lshlrev_b32 v2, 4, v1")
    st_buf = STA if kind == 'qkv' else STB
    cs_buf = CS_QKV if kind == 'qkv' else CS_1
    a("s_cmp_ge_u32 s17, 2")
    a(f"s_cbranch_scc1 {P}_ld_feat")
    a("s_lshl_b32 s21, s13, 7")
    a("s_lshl_b32 s22, s17, 6")
    a("s_add_u32 s21, s21, s22")
    a("s_lshl_b32 s21, s21, 6")
    a(f"s_add_u32 s21, s21, {st_buf}")
    a("v_lshlrev_b32 v3, 6, v1")
    for q in range(4):
        a(f"buffer_load_dwordx4 v[{8+4*q}:{8+4*q+3}], v3, s[4:7], s21 offen offset:{16*q}")
    a(f"s_branch {P}_ld_go")
    a.lab(f"{P}_ld_feat")
    a("s_lshl_b32 s21, s14, 7")
    a("s_sub_u32 s22, s17, 2")
    a("s_lshl_b32 s22, s22, 6")
    a("s_add_u32 s21, s21, s22")
    a("s_lshl_b32 s22, s21, 2")
    a(f"s_add_u32 s22, s22, {cs_buf}")
    a("v_lshlrev_b32 v3, 2, v1")
    a("buffer_load_dword v8, v3, s[4:7], s22 offen")
    if kind == 'w1':
        a("s_lshl_b32 s22, s21, 1")
        a("v_lshlrev_b32 v4, 1, v1")
        a("buffer_load_ushort v9, v4, s[8:11], s22 offen")
    a.lab(f"{P}_ld_go")
    def issue(st):
        slot = st % 4
        a(f"s_add_u32 m0, s20, {slot*32768}")
        for q in range(4):
            a(f"buffer_load_dwordx4 v2, s[4:7], s18 offen offset:{q*1024} lds")
        a(f"s_add_u32 m0, s20, {slot*32768 + 16384}")
        for q in range(4):
            a(f"buffer_load_dwordx4 v2, s[4:7], s19 offen offset:{q*1024} lds")
        if st < 9:
            a("s_add_u32 s18, s18, 0x1000")
            a("s_add_u32 s19, s19, 0x1000")
    for st in range(4): issue(st)
    a("s_waitcnt vmcnt(32)")
    a("s_cmp_ge_u32 s17, 2")
    a(f"s_cbranch_scc1 {P}_st_feat")
    for q in range(1, 4):
        pass
    a("v_add_f32 v8, v8, v10"); a("v_add_f32 v9, v9, v11")
    a("v_add_f32 v12, v12, v14"); a("v_add_f32 v13, v13, v15")
    a("v_add_f32 v16, v16, v18"); a("v_add_f32 v17, v17, v19")
    a("v_add_f32 v20, v20, v22"); a("v_add_f32 v21, v21, v23")
    a("v_add_f32 v8, v8, v12"); a("v_add_f32 v9, v9, v13")
    a("v_add_f32 v16, v16, v20"); a("v_add_f32 v17, v17, v21")
    a("v_add_f32 v8, v8, v16"); a("v_add_f32 v9, v9, v17")
    a(f"v_mul_f32 v8, {fhex(1.0/640)}, v8")
    a(f"v_mul_f32 v9, {fhex(1.0/640)}, v9")
    a("v_fma_f32 v9, -v8, v8, v9")
    a("v_max_f32 v9, 0, v9")
    a(f"v_add_f32 v10, {fhex(1e-5)}, v9")
    a("v_rsq_f32 v10, v10")
    if kind == 'w1':
        a("v_mul_f32 v11, v10, v10")
        a("v_mul_f32 v11, v9, v11")
        a(f"v_add_f32 v11, {fhex(1e-5)}, v11")
        a("v_rsq_f32 v11, v11")
        a("v_mul_f32 v10, v10, v11")
    else:
        a("s_cmp_lt_u32 s14, 5")
        a(f"s_cselect_b32 s21, {fhex(QSCALE)}, 1.0")
        a("v_mul_f32 v10, s21, v10")
    a("v_mul_f32 v11, v8, v10")
    a("s_lshl_b32 s21, s17, 8")
    a(f"s_add_u32 s21, s21, {LST}")
    a("v_lshlrev_b32 v3, 2, v1")
    a("v_add_u32 v3, s21, v3")
    a("ds_write_b32 v3, v10")
    a("ds_write_b32 v3, v11 offset:512")
    a(f"s_branch {P}_st_done")
    a.lab(f"{P}_st_feat")
    a("s_sub_u32 s21, s17, 2")
    a("s_lshl_b32 s21, s21, 8")
    a(f"s_add_u32 s21, s21, {LST + 1024}")
    a("v_lshlrev_b32 v3, 2, v1")
    a("v_add_u32 v3, s21, v3")
    a("ds_write_b32 v3, v8")
    if kind == 'w1':
        a("v_lshlrev_b32 v9, 16, v9")
        a("ds_write_b32 v3, v9 offset:512")
    a.lab(f"{P}_st_done")
    a("s_waitcnt vmcnt(24) lgkmcnt(0)")
    a("s_barrier")
    for s in range(9):
        n = 16 if s <= 6 else (8 if s == 7 else 0)
        a(f"s_waitcnt vmcnt({n})")
        a("s_barrier")
        if s + 4 <= 9: issue(s + 4)
    a("s_endpgm")

def pk_bc(j):
    return f"op_sel:[0,{j},0] op_sel_hi:[1,{j},1]"

def store_tile_chunks(a, vals, T, i, soff, imm_i=2048):
    for gp in range(2):
        t = T + 4*gp
        for q in range(4):
            a(f"v_cvt_pk_bf16_f32 v{t+q}, v{vals[8*gp+2*q]}, v{vals[8*gp+2*q+1]}")
    for gp in range(2):
        t = T + 4*gp
        a(f"v_permlane32_swap_b32 v{t}, v{t+2}")
        a(f"v_permlane32_swap_b32 v{t+1}, v{t+3}")
    for gp in range(2):
        t = T + 4*gp
        a(f"buffer_store_dwordx4 v[{t}:{t+3}], v4, s[4:7], s{soff} offen offset:{i*imm_i + gp*1024}")

def epi_common_rowcol(a, kind):
    a("v_lshlrev_b32 v4, 4, v1")
    a("v_lshrrev_b32 v5, 5, v1")
    a("v_lshlrev_b32 v5, 4, v5")
    a("s_lshl_b32 s21, s22, 8")
    a(f"s_add_u32 s21, s21, {LST}")
    a("v_add_u32 v5, s21, v5")
    a("v_and_b32 v6, 31, v1")
    a("v_lshlrev_b32 v6, 2, v6")
    a("s_lshl_b32 s21, s23, 8")
    a(f"s_add_u32 s21, s21, {LST}")
    a("v_add_u32 v6, s21, v6")

def epi_qk(a, P):
    a.lab(f"{P}_epi_qk")
    a("ds_read_b32 v8, v6")
    a("ds_read_b32 v9, v6 offset:128")
    a("ds_read_b32 v10, v6 offset:512")
    a("ds_read_b32 v11, v6 offset:640")
    CR = [12, 128]
    for i in range(2):
        for g in range(4):
            a(f"ds_read_b128 v[{CR[i]+4*g}:{CR[i]+4*g+3}], v5 offset:{1024 + i*128 + g*32}")
    a("s_cmp_lt_u32 s14, 5")
    a(f"s_mov_b32 s25, {QB}")
    a(f"s_cselect_b32 s24, s25, {KB - 20*2048}")
    a("s_lshl_b32 s25, s14, 2")
    a("s_lshl_b32 s26, s22, 1")
    a("s_add_u32 s25, s25, s26")
    a("s_lshl_b32 s25, s25, 11")
    a("s_add_u32 s24, s24, s25")
    a("s_lshl_b32 s25, s13, 2")
    a("s_lshl_b32 s26, s23, 1")
    a("s_add_u32 s25, s25, s26")
    a(f"s_mul_i32 s25, s25, {BLK}")
    a("s_add_u32 s24, s24, s25")
    a(f"s_add_u32 s25, s24, {BLK}")
    a("s_waitcnt lgkmcnt(0)")
    n = 0
    for j in range(2):
        for i in range(2):
            U = 144 + 16*(n & 1)
            T = 32 + 8*(n & 3)
            c = acc(i, j)
            for p in range(8):
                a(f"v_pk_mul_f32 v[{U+2*p}:{U+2*p+1}], v[{CR[i]+2*p}:{CR[i]+2*p+1}], v[10:11] op_sel:[0,{j}] op_sel_hi:[1,{j}]")
            for p in range(8):
                a(f"v_pk_fma_f32 v[{U+2*p}:{U+2*p+1}], v[{c+2*p}:{c+2*p+1}], v[8:9], v[{U+2*p}:{U+2*p+1}] {pk_bc(j)} neg_lo:[0,0,1] neg_hi:[0,0,1]")
            store_tile_chunks(a, [U+q for q in range(16)], T, i, 24 + j)
            n += 1
    a("s_endpgm")

def epi_v(a, P):
    a.lab(f"{P}_epi_v")
    a("ds_read_b32 v8, v6 offset:1024")
    a("ds_read_b32 v9, v6 offset:1152")
    RR = [12, 128]; MM = [32, 144]
    for i in range(2):
        for g in range(4):
            a(f"ds_read_b128 v[{RR[i]+4*g}:{RR[i]+4*g+3}], v5 offset:{i*128 + g*32}")
            a(f"ds_read_b128 v[{MM[i]+4*g}:{MM[i]+4*g+3}], v5 offset:{512 + i*128 + g*32}")
    a("v_and_b32 v7, 31, v1")
    a("s_sub_u32 s24, s14, 10")
    a("s_lshl_b32 s24, s24, 2")
    a("s_lshl_b32 s25, s23, 1")
    a("s_add_u32 s24, s24, s25")
    a("s_lshl_b32 s24, s24, 5")
    a("v_lshrrev_b32 v48, 5, v1")
    a("v_mul_u32_u24 v48, 336, v48")
    for j in range(2):
        a(f"v_add_u32 v49, s24, v7")
        if j: a("v_add_u32 v49, 32, v49")
        a("v_mul_u32_u24 v50, 3277, v49")
        a("v_lshrrev_b32 v50, 16, v50")
        a("v_mul_u32_u24 v51, 20, v50")
        a("v_sub_u32 v51, v49, v51")
        a("v_lshlrev_b32 v51, 4, v51")
        a(f"s_mov_b32 s25, {128*672}")
        a("v_mul_lo_u32 v50, v50, s25")
        a("v_add_u32 v50, v50, v51")
        a(f"v_add_u32 v{10+j}, v50, v48")
    a("s_lshl_b32 s24, s13, 2")
    a("s_lshl_b32 s25, s22, 1")
    a("s_add_u32 s24, s24, s25")
    a("s_mul_i32 s24, s24, 1344")
    a(f"s_add_u32 s24, s24, {VB}")
    a("s_waitcnt lgkmcnt(0)")
    n = 0
    for i in range(2):
        for j in range(2):
            U = 160 + 16*(n & 1)
            T = 48 + 8*(n & 1)
            c = acc(i, j)
            for p in range(8):
                a(f"v_pk_mul_f32 v[{U+2*p}:{U+2*p+1}], v[{MM[i]+2*p}:{MM[i]+2*p+1}], v[8:9] op_sel:[0,{j}] op_sel_hi:[1,{j}]")
            for p in range(8):
                a(f"v_pk_fma_f32 v[{U+2*p}:{U+2*p+1}], v[{c+2*p}:{c+2*p+1}], v[{RR[i]+2*p}:{RR[i]+2*p+1}], v[{U+2*p}:{U+2*p+1}] neg_lo:[0,0,1] neg_hi:[0,0,1]")
            for q in range(8):
                a(f"v_cvt_pk_bf16_f32 v{T+q}, v{U+2*q}, v{U+2*q+1}")
            for q in range(2):
                a(f"buffer_store_dwordx4 v[{T+4*q}:{T+4*q+3}], v{10+j}, s[4:7], s24 offen offset:{i*1344 + q*672}")
            n += 1
    a("s_endpgm")

K0 = -2.0 * 1.4426950408889634 * (2.0 / 3.141592653589793) ** 0.5
K1 = K0 * 0.044715

def epi_w1(a, P):
    a("ds_read_b32 v8, v6")
    a("ds_read_b32 v9, v6 offset:128")
    a("ds_read_b32 v10, v6 offset:512")
    a("ds_read_b32 v11, v6 offset:640")
    CR = [12, 128]; BR = [32, 144]
    for i in range(2):
        for g in range(4):
            a(f"ds_read_b128 v[{CR[i]+4*g}:{CR[i]+4*g+3}], v5 offset:{1024 + i*128 + g*32}")
            a(f"ds_read_b128 v[{BR[i]+4*g}:{BR[i]+4*g+3}], v5 offset:{1536 + i*128 + g*32}")
    a("s_lshl_b32 s25, s14, 2")
    a("s_lshl_b32 s26, s22, 1")
    a("s_add_u32 s25, s25, s26")
    a("s_lshl_b32 s24, s25, 11")
    a(f"s_add_u32 s24, s24, {HB}")
    a("s_lshl_b32 s25, s13, 2")
    a("s_lshl_b32 s26, s23, 1")
    a("s_add_u32 s25, s25, s26")
    a(f"s_mul_i32 s25, s25, {BLKH}")
    a("s_add_u32 s24, s24, s25")
    a(f"s_add_u32 s25, s24, {BLKH}")
    a(f"v_mov_b32 v160, {fhex(K0)}")
    a(f"v_mov_b32 v161, {fhex(K1)}")
    a("v_mov_b32 v162, 1.0")
    a("v_mov_b32 v163, 1.0")
    a("s_waitcnt lgkmcnt(0)")
    n = 0
    for j in range(2):
        for i in range(2):
            Z = 164 + 32*(n & 1); U = Z + 16
            T = 48 + 8*(n & 1)
            c = acc(i, j)
            pr = lambda x, p: f"v[{x+2*p}:{x+2*p+1}]"
            for p in range(8):
                a(f"v_pk_fma_f32 {pr(Z,p)}, {pr(CR[i],p)}, v[10:11], {pr(BR[i],p)} {pk_bc(j)} neg_lo:[0,1,0] neg_hi:[0,1,0]")
            for p in range(8):
                a(f"v_pk_fma_f32 {pr(Z,p)}, {pr(c,p)}, v[8:9], {pr(Z,p)} {pk_bc(j)}")
            for p in range(8):
                a(f"v_pk_mul_f32 {pr(U,p)}, {pr(Z,p)}, {pr(Z,p)}")
            for p in range(8):
                a(f"v_pk_fma_f32 {pr(U,p)}, {pr(U,p)}, v[160:161], v[160:161] op_sel:[0,1,0] op_sel_hi:[1,1,0]")
            for p in range(8):
                a(f"v_pk_mul_f32 {pr(U,p)}, {pr(U,p)}, {pr(Z,p)}")
            for q in range(16):
                a(f"v_exp_f32 v{U+q}, v{U+q}")
            for p in range(8):
                a(f"v_pk_add_f32 {pr(U,p)}, {pr(U,p)}, v[162:163]")
            for q in range(16):
                a(f"v_rcp_f32 v{U+q}, v{U+q}")
            for p in range(8):
                a(f"v_pk_mul_f32 {pr(U,p)}, {pr(U,p)}, {pr(Z,p)}")
            store_tile_chunks(a, [U+q for q in range(16)], T, i, 24 + j)
            n += 1
    a("s_endpgm")

def gen_g1(kind):
    P = "QKV" if kind == 'qkv' else "W1"
    nwg = 240 if kind == 'qkv' else 192
    a = Asm()
    a(f"s_cmp_ge_u32 s2, {nwg}")
    a(f"s_cbranch_scc1 {P}_end")
    a("s_load_dwordx2 s[4:5], s[0:1], 80")
    if kind == 'w1':
        a("s_load_dwordx2 s[8:9], s[0:1], 40")
    a("v_lshrrev_b32 v1, 6, v0")
    a("v_readfirstlane_b32 s12, v1")
    a("v_and_b32 v1, 63, v0")
    a(f"s_mov_b32 s6, {hex(WS_BYTES)}")
    a("s_mov_b32 s7, 0x00020000")
    if kind == 'w1':
        a("s_mov_b32 s10, 3072")
        a("s_mov_b32 s11, 0x00020000")
    a("s_and_b32 s13, s2, 7")
    a("s_lshl_b32 s13, s13, 1")
    a("s_lshr_b32 s14, s2, 3")
    a("s_and_b32 s15, s14, 1")
    a("s_add_u32 s13, s13, s15")
    a("s_lshr_b32 s14, s14, 1")
    xsrc = XA if kind == 'qkv' else XB
    wsrc = WT_QKV if kind == 'qkv' else WT_1
    a(f"s_mul_i32 s15, s14, {4*BLK}")
    a(f"s_add_u32 s15, s15, {wsrc}")
    a(f"s_mul_i32 s16, s13, {4*BLK}")
    a(f"s_add_u32 s16, s16, {xsrc}")
    if kind == 'qkv':
        a("s_cmp_ge_u32 s14, 10")
        a("s_cselect_b32 s17, s16, s15")
        a("s_cselect_b32 s16, s15, s16")
        a("s_mov_b32 s15, s17")
    a("s_waitcnt lgkmcnt(0)")
    a("s_cmp_ge_u32 s12, 4")
    a(f"s_cbranch_scc1 {P}_loader")
    a("s_lshr_b32 s22, s12, 1")
    a("s_and_b32 s23, s12, 1")
    a("v_lshlrev_b32 v2, 4, v1")
    a("s_lshl_b32 s21, s22, 13")
    a("v_add_u32 v2, s21, v2")
    a("v_lshlrev_b32 v3, 4, v1")
    a("s_lshl_b32 s21, s23, 13")
    a("s_add_u32 s21, s21, 16384")
    a("v_add_u32 v3, s21, v3")
    for r in range(64): a(f"v_mov_b32 v{ACC+r}, 0")
    epi_common_rowcol(a, kind)
    a("s_barrier")
    for n in (0, 2, 3, 1): rd(a, 0, n, 0)
    a("s_mov_b32 s27, 9")
    a.lab(f"{P}_loop")
    consumer_stage(a, False)
    a("s_sub_u32 s27, s27, 1")
    a("s_cmp_lg_u32 s27, 0")
    a(f"s_cbranch_scc1 {P}_loop")
    consumer_stage(a, True)
    if kind == 'qkv':
        a("s_cmp_ge_u32 s14, 10")
        a(f"s_cbranch_scc1 {P}_epi_v")
        epi_qk(a, P)
        epi_v(a, P)
    else:
        epi_w1(a, P)
    loader(a, kind, P)
    a.lab(f"{P}_end")
    a("s_endpgm")
    return a
```

```python
from common import *

RB = 16
def TT(r, bb): return RB + 36*r + 4*bb
def WW(r, x): return RB + 36*r + 16 + 4*x
ACC = 160
def acc(x, bb): return ACC + (x*4 + bb)*4
G2_LDS = 61440

def gen_g2(kind):
    P = {'wo': 'WO', 'w2a': 'W2A', 'w2b': 'W2B'}[kind]
    isw2 = kind != 'wo'
    blk = BLKH if isw2 else BLK
    ns = 12 if isw2 else 5
    tsrc = HB if isw2 else OB
    wsrc = WT_2 if isw2 else WT_O
    res = XB if isw2 else XA
    dst = {'wo': XB, 'w2a': XA, 'w2b': None}[kind]
    stb = {'wo': STB, 'w2a': STA, 'w2b': None}[kind]
    a = Asm()
    a("s_cmp_ge_u32 s2, 256")
    a(f"s_cbranch_scc1 {P}_end")
    a("s_load_dwordx2 s[4:5], s[0:1], 80")
    if isw2: a("s_load_dwordx2 s[8:9], s[0:1], 56")
    if kind == 'w2b': a("s_load_dwordx2 s[36:37], s[0:1], 64")
    a("v_lshrrev_b32 v1, 6, v0")
    a("v_readfirstlane_b32 s12, v1")
    a("v_and_b32 v1, 63, v0")
    a(f"s_mov_b32 s6, {hex(WS_BYTES)}")
    a("s_mov_b32 s7, 0x00020000")
    if isw2:
        a("s_mov_b32 s10, 1280")
        a("s_mov_b32 s11, 0x00020000")
    if kind == 'w2b':
        a(f"s_mov_b32 s38, {2048*1280}")
        a("s_mov_b32 s39, 0x00020000")
    a("s_and_b32 s13, s2, 7")
    a("s_lshl_b32 s13, s13, 2")
    a("s_lshr_b32 s14, s2, 3")
    a("s_and_b32 s14, s14, 3")
    a("s_add_u32 s13, s13, s14")
    a("s_lshr_b32 s14, s2, 5")
    a(f"s_mul_i32 s15, s12, {ns*2048}")
    for bb in range(4):
        a(f"s_add_u32 s26, s12, {bb}")
        a("s_and_b32 s26, s26, 3")
        a("s_lshr_b32 s27, s26, 1")
        a("s_lshl_b32 s28, s13, 1")
        a("s_add_u32 s27, s27, s28")
        a(f"s_mul_i32 s27, s27, {blk}")
        a("s_and_b32 s26, s26, 1")
        a("s_lshl_b32 s26, s26, 8")
        a("s_add_u32 s27, s27, s26")
        a("s_add_u32 s27, s27, s15")
        a(f"s_add_u32 s{16+bb}, s27, {tsrc}")
    for x in range(5):
        a("s_mul_i32 s26, s14, 5")
        a(f"s_add_u32 s26, s26, {x}")
        a("s_lshr_b32 s27, s26, 1")
        a(f"s_mul_i32 s27, s27, {blk}")
        a("s_and_b32 s26, s26, 1")
        a("s_lshl_b32 s26, s26, 8")
        a("s_add_u32 s27, s27, s26")
        a("s_add_u32 s27, s27, s15")
        a(f"s_add_u32 s{20+x}, s27, {wsrc}")
    a("v_lshrrev_b32 v3, 4, v1")
    a("v_lshlrev_b32 v2, 9, v3")
    a("v_and_b32 v4, 15, v1")
    a("v_lshlrev_b32 v5, 4, v4")
    a("v_add_u32 v2, v2, v5")
    a("s_waitcnt lgkmcnt(0)")
    def loads(r):
        L = []
        for x in range(5):
            L.append(f"buffer_load_dwordx4 v[{WW(r,x)}:{WW(r,x)+3}], v2, s[4:7], s{20+x} offen")
            if x < 4:
                L.append(f"buffer_load_dwordx4 v[{TT(r,x)}:{TT(r,x)+3}], v2, s[4:7], s{16+x} offen")
        L.append("v_add_u32 v2, 0x800, v2")
        return L
    for s in range(3):
        for t in loads(s): a(t)
    for s in range(ns):
        r = s % 4
        nout = min(2, ns - 1 - s)
        a(f"s_waitcnt vmcnt({9*nout})")
        L = loads((s + 3) % 4) if s + 3 < ns else []
        k = 0
        for x in range(5):
            for bb in range(4):
                c = acc(x, bb)
                src = "0" if s == 0 else f"v[{c}:{c+3}]"
                a(f"v_mfma_f32_16x16x32_bf16 v[{c}:{c+3}], v[{WW(r,x)}:{WW(r,x)+3}], v[{TT(r,bb)}:{TT(r,bb)+3}], {src}")
                k += 1
                if k % 2 == 0 and L: a(L.pop(0))
        assert not L
    a("v_lshrrev_b32 v6, 1, v3")
    a("v_lshlrev_b32 v6, 9, v6")
    a("v_and_b32 v7, 1, v3")
    a("v_lshlrev_b32 v7, 3, v7")
    a("v_add_u32 v6, v6, v7")
    a("v_add_u32 v6, v6, v5")
    a("s_lshl_b32 s26, s13, 1")
    a("s_lshr_b32 s27, s12, 1")
    a("s_add_u32 s26, s26, s27")
    a(f"s_mul_i32 s26, s26, {BLK}")
    a("s_and_b32 s27, s12, 1")
    a("s_lshl_b32 s27, s27, 8")
    a("s_add_u32 s26, s26, s27")
    a("s_mul_i32 s27, s14, 5120")
    a("s_add_u32 s26, s26, s27")
    a(f"s_add_u32 s28, s26, {res}")
    a(f"s_add_u32 s29, s28, 4096")
    RES = 16; BIA = 26
    for x in range(5):
        so = 28 if x < 4 else 29
        a(f"buffer_load_dwordx2 v[{RES+2*x}:{RES+2*x+1}], v6, s[4:7], s{so} offen offset:{(x*1024) % 4096}")
    if isw2:
        a("v_lshlrev_b32 v7, 3, v3")
        a("s_mul_i32 s30, s14, 160")
        for x in range(5):
            a(f"buffer_load_dwordx2 v[{BIA+2*x}:{BIA+2*x+1}], v7, s[8:11], s30 offen offset:{x*32}")
    a("v_lshlrev_b32 v8, 4, v1")
    for bb in range(1, 4):
        a(f"s_add_u32 s31, s12, {bb}")
        a("s_and_b32 s31, s31, 3")
        a("s_mul_i32 s31, s31, 15360")
        a(f"s_add_u32 s31, s31, {(bb-1)*5120}")
        a(f"v_add_u32 v{8+bb}, s31, v8")
    for bb in range(1, 4):
        for x in range(5):
            c = acc(x, bb)
            a(f"ds_write_b128 v{8+bb}, v[{c}:{c+3}] offset:{x*1024}")
    a("s_mul_i32 s31, s12, 15360")
    a("v_add_u32 v8, s31, v8")
    a("s_waitcnt lgkmcnt(0)")
    a("s_barrier")
    RD = 40
    for sl in range(3):
        for x in range(5):
            d = RD + (sl*5 + x)*4
            a(f"ds_read_b128 v[{d}:{d+3}], v8 offset:{sl*5120 + x*1024}")
    for sl in range(3):
        a(f"s_waitcnt lgkmcnt({5*(2-sl)})")
        for x in range(5):
            d = RD + (sl*5 + x)*4; c = acc(x, 0)
            for h in range(2):
                a(f"v_pk_add_f32 v[{c+2*h}:{c+2*h+1}], v[{c+2*h}:{c+2*h+1}], v[{d+2*h}:{d+2*h+1}]")
    a("s_waitcnt vmcnt(0)")
    U = 100
    srcs = [RES] + ([BIA] if isw2 else [])
    for src in srcs:
        for x in range(5):
            for h in range(2):
                a(f"v_lshlrev_b32 v{U+4*x+2*h}, 16, v{src+2*x+h}")
                a(f"v_and_b32 v{U+4*x+2*h+1}, 0xffff0000, v{src+2*x+h}")
        for x in range(5):
            c = acc(x, 0)
            for h in range(2):
                a(f"v_pk_add_f32 v[{c+2*h}:{c+2*h+1}], v[{c+2*h}:{c+2*h+1}], v[{U+4*x+2*h}:{U+4*x+2*h+1}]")
    T = 120
    for x in range(5):
        c = acc(x, 0)
        a(f"v_cvt_pk_bf16_f32 v{T+2*x}, v{c}, v{c+1}")
        a(f"v_cvt_pk_bf16_f32 v{T+2*x+1}, v{c+2}, v{c+3}")
    if dst is not None:
        a(f"s_add_u32 s28, s26, {dst}")
        a(f"s_add_u32 s29, s28, 4096")
        for x in range(5):
            so = 28 if x < 4 else 29
            a(f"buffer_store_dwordx2 v[{T+2*x}:{T+2*x+1}], v6, s[4:7], s{so} offen offset:{(x*1024) % 4096}")
        a("v_mov_b32 v130, 0"); a("v_mov_b32 v131, 0")
        a("v_mov_b32 v132, 0"); a("v_mov_b32 v133, 0")
        for x in range(5):
            c = acc(x, 0)
            for q in range(4):
                a(f"v_add_f32 v{130 + 2*(q&1)}, v{130 + 2*(q&1)}, v{c+q}")
                a(f"v_fmac_f32 v{131 + 2*(q&1)}, v{c+q}, v{c+q}")
        a("v_add_f32 v130, v130, v132")
        a("v_add_f32 v131, v131, v133")
        for sw in ("v_permlane16_swap_b32", "v_permlane32_swap_b32"):
            a("v_mov_b32 v132, v130")
            a("v_mov_b32 v133, v131")
            a(f"{sw} v130, v132")
            a(f"{sw} v131, v133")
            a("v_add_f32 v130, v130, v132")
            a("v_add_f32 v131, v131, v133")
        a("s_lshl_b32 s30, s13, 2")
        a("s_add_u32 s30, s30, s12")
        a("s_lshl_b32 s30, s30, 10")
        a("s_lshl_b32 s31, s14, 3")
        a("s_add_u32 s30, s30, s31")
        a(f"s_add_u32 s30, s30, {stb}")
        a("v_lshlrev_b32 v7, 6, v4")
        a("s_mov_b64 exec, 0xffff")
        a("buffer_store_dwordx2 v[130:131], v7, s[4:7], s30 offen")
    else:
        a("v_mul_u32_u24 v7, 1280, v4")
        a("v_lshlrev_b32 v9, 3, v3")
        a("v_add_u32 v7, v7, v9")
        a("s_lshl_b32 s30, s13, 2")
        a("s_add_u32 s30, s30, s12")
        a(f"s_mul_i32 s30, s30, {16*1280}")
        a("s_mul_i32 s31, s14, 160")
        a("s_add_u32 s30, s30, s31")
        for x in range(5):
            a(f"buffer_store_dwordx2 v[{T+2*x}:{T+2*x+1}], v7, s[36:39], s30 offen offset:{x*32}")
    a.lab(f"{P}_end")
    a("s_endpgm")
    return a
```

```python
from common import *

def p0_weight(a, kind):
    cfg = {
        'qkv': dict(u0=0,   ptr=14, nbytes=640*3840,  stride=3840, nsteps=10, cs=CS_QKV, dst=WT_QKV),
        'wo':  dict(u0=60,  ptr=16, nbytes=640*1280,  stride=1280, nsteps=10, cs=None,   dst=WT_O),
        'w1':  dict(u0=80,  ptr=18, nbytes=640*3072,  stride=3072, nsteps=10, cs=CS_1,   dst=WT_1),
        'w2':  dict(u0=128, ptr=20, nbytes=1536*1280, stride=1280, nsteps=12, cs=None,   dst=WT_2),
    }[kind]
    st = cfg['stride']; ns = cfg['nsteps']
    a.lab(f"P0_{kind}")
    a(f"s_sub_u32 s23, s2, {cfg['u0']}")
    srd(a, 8, cfg['ptr'], cfg['nbytes'])
    if kind == 'w2':
        a("s_lshr_b32 s26, s23, 1")
        a("s_and_b32 s27, s23, 1")
        a("s_lshl_b32 s24, s26, 6")
        a(f"s_mul_i32 s28, s27, {768*1280}")
        a("s_add_u32 s24, s24, s28")
        a(f"s_mul_i32 s25, s26, {BLKH}")
        a(f"s_mul_i32 s28, s27, 49152")
        a("s_add_u32 s25, s25, s28")
        a(f"s_add_u32 s25, s25, {cfg['dst']}")
    else:
        a("s_lshl_b32 s24, s23, 6")
        if kind == 'qkv':
            a(f"s_mov_b32 s25, {cfg['dst']}")
        else:
            a(f"s_mul_i32 s25, s23, {BLK}")
            a(f"s_add_u32 s25, s25, {cfg['dst']}")
    a(f"s_mul_i32 s28, s22, {ns*16*st}")
    a("s_add_u32 s24, s24, s28")
    a(f"s_mul_i32 s28, s22, {ns*1024}")
    a("s_add_u32 s25, s25, s28")
    a("s_mov_b32 m0, s28")
    a("v_lshrrev_b32 v2, 2, v1")
    a(f"s_mov_b32 s29, {st}")
    a("v_mul_lo_u32 v2, v2, s29")
    a("v_and_b32 v3, 3, v1")
    a("v_lshlrev_b32 v3, 4, v3")
    a("v_add_u32 v2, v2, v3")
    for j in range(ns):
        a("buffer_load_dwordx4 v2, s[8:11], s24 offen lds")
        if j < ns - 1:
            a(f"s_add_u32 s24, s24, {16*st}")
            a("s_add_u32 m0, m0, 0x400")
    a("v_and_b32 v4, 15, v1")
    a("v_lshrrev_b32 v4, 2, v4")
    a("v_lshlrev_b32 v4, 6, v4")
    a("v_and_b32 v6, 16, v1")
    a("v_lshlrev_b32 v6, 1, v6")
    a("v_add_u32 v4, v4, v6")
    a("v_and_b32 v6, 3, v1")
    a("v_lshlrev_b32 v6, 3, v6")
    a("v_add_u32 v4, v4, v6")
    a("v_add_u32 v4, s28, v4")
    a("v_lshrrev_b32 v5, 5, v1")
    if kind != 'wo':
        a("v_lshlrev_b32 v6, 9, v5")
        a("v_add_u32 v4, v4, v6")
        rd = lambda j, b: (4, j*1024 + b*256)
    else:
        OG = [(0,1),(2,3),(4,9),(5,6),(7,8)]
        def rel(j, hh, b):
            c = 2*j + hh
            return 40*(c//5) + 4*OG[c % 5][b]
        diffs = sorted({rel(j,1,b) - rel(j,0,b) for j in range(10) for b in range(2)})
        reg = {}
        for n, d in enumerate(diffs):
            r = 64 + n
            reg[d] = r
            a(f"v_mul_i32_i24 v{r}, {d*64}, v5")
            a(f"v_add_u32 v{r}, v4, v{r}")
        rd = lambda j, b: (reg[rel(j,1,b) - rel(j,0,b)], rel(j,0,b)*64)
    if kind == 'qkv':
        a("v_and_b32 v8, 31, v1")
        a("s_cmp_ge_u32 s23, 40")
        a("s_cbranch_scc1 P0_qkv_noperm")
        a("s_cmp_ge_u32 s23, 20")
        a("s_cselect_b32 s30, 20, 0")
        a("s_sub_u32 s31, s23, s30")
        a("s_lshl_b32 s31, s31, 5")
        a("v_add_u32 v8, s31, v8")
        a("v_mul_u32_u24 v9, 1639, v8")
        a("v_lshrrev_b32 v9, 16, v9")
        a("v_mul_u32_u24 v9, 40, v9")
        a("v_sub_u32 v9, v8, v9")
        a("v_lshrrev_b32 v9, 2, v9")
        a("v_add_u32 v10, 3, v9")
        a("v_lshrrev_b32 v10, 3, v10")
        a("v_add_u32 v9, 7, v9")
        a("v_lshrrev_b32 v9, 4, v9")
        a("v_mul_u32_u24 v9, 5, v9")
        a("v_sub_u32 v10, v10, v9")
        a("v_lshlrev_b32 v10, 2, v10")
        a("v_add_u32 v8, v8, v10")
        a("s_lshl_b32 s30, s30, 5")
        a("v_add_u32 v8, s30, v8")
        a("s_branch P0_qkv_j")
        a.lab("P0_qkv_noperm")
        a("s_lshl_b32 s31, s23, 5")
        a("v_add_u32 v8, s31, v8")
        a.lab("P0_qkv_j")
        a("v_lshrrev_b32 v9, 5, v8")
        a(f"s_mov_b32 s29, {BLK}")
        a("v_mul_lo_u32 v9, v9, s29")
        a("v_and_b32 v10, 31, v8")
        a("v_lshlrev_b32 v10, 4, v10")
        a("v_add_u32 v7, v9, v10")
        a("v_lshlrev_b32 v10, 9, v5")
        a("v_add_u32 v7, v7, v10")
    else:
        a("v_lshlrev_b32 v7, 4, v1")
        if kind == 'w1':
            a("v_and_b32 v8, 31, v1")
            a("s_lshl_b32 s31, s23, 5")
            a("v_add_u32 v8, s31, v8")
    a("s_waitcnt vmcnt(0)")
    a("s_barrier")
    for j in range(ns):
        for b in range(2):
            r, off = rd(j, b)
            a(f"ds_read_b64_tr_b16 v[{16+4*j+2*b}:{16+4*j+2*b+1}], v{r} offset:{off}")
    if cfg['cs'] is not None:
        a("s_mov_b32 s30, 0x3f803f80")
        a("v_mov_b32 v12, 0")
        a("v_mov_b32 v13, 0")
    for j in range(ns):
        a(f"s_waitcnt lgkmcnt({min(15, 2*(ns-1-j))})")
        a(f"buffer_store_dwordx4 v[{16+4*j}:{16+4*j+3}], v7, s[4:7], s25 offen")
        if j < ns - 1: a("s_add_u32 s25, s25, 0x400")
        if cfg['cs'] is not None:
            a(f"v_dot2c_f32_bf16 v12, s30, v{16+4*j}")
            a(f"v_dot2c_f32_bf16 v13, s30, v{16+4*j+1}")
            a(f"v_dot2c_f32_bf16 v12, s30, v{16+4*j+2}")
            a(f"v_dot2c_f32_bf16 v13, s30, v{16+4*j+3}")
    if cfg['cs'] is not None:
        a("v_add_f32 v12, v12, v13")
        a("v_lshlrev_b32 v14, 2, v0")
        a("ds_write_b32 v14, v12 offset:49152")
        a("s_waitcnt lgkmcnt(0)")
        a("s_barrier")
        a("s_cmp_lg_u32 s22, 0")
        a(f"s_cbranch_scc1 P0_end")
        a("v_and_b32 v14, 31, v1")
        a("v_lshlrev_b32 v14, 2, v14")
        for q in range(8):
            a(f"ds_read_b32 v{16+q}, v14 offset:{49152 + q*128}")
        a("s_waitcnt lgkmcnt(0)")
        for q in range(1, 8):
            a(f"v_add_f32 v16, v16, v{16+q}")
        a("v_lshlrev_b32 v8, 2, v8")
        a(f"s_mov_b32 s25, {cfg['cs']}")
        a("s_mov_b32 exec_hi, 0")
        a("buffer_store_dword v16, v8, s[4:7], s25 offen")
    a("s_endpgm")

def p0_x(a):
    a.lab("P0_x")
    a("s_sub_u32 s23, s2, 168")
    srd(a, 8, 12, 2048*1280)
    a(f"s_mul_i32 s24, s23, {BLK}")
    a("v_and_b32 v2, 31, v1")
    a("v_lshrrev_b32 v5, 5, v1")
    a("v_mul_u32_u24 v3, 1280, v2")
    a("v_lshlrev_b32 v4, 4, v5")
    a("v_add_u32 v3, v3, v4")
    a("s_lshl_b32 s25, s22, 5")
    a("v_add_u32 v3, s25, v3")
    for j in range(10):
        a(f"buffer_load_dwordx4 v[{16+4*j}:{16+4*j+3}], v3, s[8:11], s24 offen offset:{j*128}")
    a("v_lshlrev_b32 v7, 4, v1")
    a("s_lshl_b32 s25, s22, 10")
    a("s_add_u32 s25, s25, s24")
    a(f"s_add_u32 s25, s25, {XA}")
    a("v_mov_b32 v12, 0")
    a("v_mov_b32 v13, 0")
    a("s_mov_b32 s30, 0x3f803f80")
    for j in range(10):
        a(f"s_waitcnt vmcnt({9})" if False else f"s_waitcnt vmcnt(9)")
        a(f"buffer_store_dwordx4 v[{16+4*j}:{16+4*j+3}], v7, s[4:7], s25 offen")
        if j < 9: a("s_add_u32 s25, s25, 0x1000")
        for q in range(4):
            a(f"v_dot2c_f32_bf16 v12, s30, v{16+4*j+q}")
        for q in range(4):
            a(f"v_dot2c_f32_bf16 v13, v{16+4*j+q}, v{16+4*j+q}")
    a("v_lshlrev_b32 v8, 6, v2")
    a("v_lshlrev_b32 v9, 3, v5")
    a("v_add_u32 v8, v8, v9")
    a("s_lshl_b32 s25, s23, 11")
    a("s_lshl_b32 s26, s22, 4")
    a("s_add_u32 s25, s25, s26")
    a(f"s_add_u32 s25, s25, {STA}")
    a("v_mov_b32 v14, v12")
    a("v_mov_b32 v15, v13")
    a("buffer_store_dwordx2 v[14:15], v8, s[4:7], s25 offen")
    a("s_endpgm")

def p0_ones(a):
    a.lab("P0_ones")
    a("s_sub_u32 s23, s2, 232")
    a("s_lshl_b32 s23, s23, 10")
    a("v_add_u32 v2, s23, v0")
    a("v_mul_u32_u24 v2, 336, v2")
    a("v_mov_b32 v4, 0x3f803f80")
    a("v_mov_b32 v5, v4")
    a("v_mov_b32 v6, v4")
    a("v_mov_b32 v7, v4")
    a(f"s_mov_b32 s25, {VB + 320}")
    for j in range(4):
        a("buffer_store_dwordx4 v[4:7], v2, s[4:7], s25 offen")
        if j < 3: a(f"s_add_u32 s25, s25, {256*336}")
    a("s_endpgm")

def gen_p0():
    a = Asm()
    a("s_cmp_ge_u32 s2, 240")
    a("s_cbranch_scc1 P0_end")
    a("s_load_dwordx4 s[12:15], s[0:1], 0")
    a("s_load_dwordx2 s[16:17], s[0:1], 16")
    a("s_load_dwordx2 s[18:19], s[0:1], 32")
    a("s_load_dwordx2 s[20:21], s[0:1], 48")
    a("s_load_dwordx2 s[4:5], s[0:1], 80")
    a("v_lshrrev_b32 v1, 6, v0")
    a("v_readfirstlane_b32 s22, v1")
    a("v_and_b32 v1, 63, v0")
    a(f"s_mov_b32 s6, {hex(WS_BYTES)}")
    a("s_mov_b32 s7, 0x00020000")
    a("s_waitcnt lgkmcnt(0)")
    a("s_cmp_lt_u32 s2, 60")
    a("s_cbranch_scc1 P0_qkv")
    a("s_cmp_lt_u32 s2, 80")
    a("s_cbranch_scc1 P0_wo")
    a("s_cmp_lt_u32 s2, 128")
    a("s_cbranch_scc1 P0_w1")
    a("s_cmp_lt_u32 s2, 168")
    a("s_cbranch_scc1 P0_w2")
    a("s_cmp_lt_u32 s2, 232")
    a("s_cbranch_scc1 P0_x")
    p0_ones(a)
    p0_x(a)
    for k in ('qkv', 'wo', 'w1', 'w2'):
        p0_weight(a, k)
    a.lab("P0_end")
    a("s_endpgm")
    return a
```

```python
import sys, os
sys.path.insert(0, os.path.dirname(os.path.abspath(__file__)))
from common import *
import k_p0, k_g1, k_att, k_g2

HEADER = open("cdna_kernels/" + NAME + ".s.ref").read().split("; Override launch")[0]

def build(out, extra_launches=()):
    main = NAME + "_kernel"
    K = {}
    K[main] = (k_p0.gen_p0(), 240, 256, 50176, 72)
    K["qkv_kernel"] = (k_g1.gen_g1('qkv'), 240, 512, k_g1.G1_LDS, 192)
    K["att_kernel"] = (k_att.gen_att(), 256, 256, 0, 168)
    K["wo_kernel"] = (k_g2.gen_g2('wo'), 256, 256, k_g2.G2_LDS, 240)
    K["w1_kernel"] = (k_g1.gen_g1('w1'), 192, 512, k_g1.G1_LDS, 228)
    K["w2a_kernel"] = (k_g2.gen_g2('w2a'), 256, 256, k_g2.G2_LDS, 240)
    K["w2b_kernel"] = (k_g2.gen_g2('w2b'), 256, 256, k_g2.G2_LDS, 240)
    if extra_launches:
        n = Asm(); n("s_endpgm")
        K["nop_kernel"] = (n, 256, 256, 0, 8)
    order = [main, "qkv_kernel", "att_kernel", "wo_kernel", "w1_kernel", "w2a_kernel",
             "qkv_kernel", "att_kernel", "wo_kernel", "w1_kernel", "w2b_kernel"] + list(extra_launches)
    t = HEADER
    for n in order:
        _, g, b, l, _ = K[n]
        t += f"; @launch kernel={n} grid=({g},1,1) block=({b},1,1) lds={l}\n"
    t += '.amdgcn_target "amdgcn-amd-amdhsa--gfx950"\n.text\n'
    for n, (a, g, b, l, v) in K.items():
        t += kernel_text(n, a, v)
    t += '.section .rodata,"a"\n'
    for n, (a, g, b, l, v) in K.items():
        t += ".p2align 6\n" + descriptor(n, v)
    open(out, "w").write(t)
    print("wrote", out, len(t), "bytes")

if __name__ == "__main__":
    out = sys.argv[1] if len(sys.argv) > 1 else "cdna_kernels/" + NAME + ".s"
    nx = int(sys.argv[2]) if len(sys.argv) > 2 else 0
    build(out, ["nop_kernel"] * nx)
```

```python
from asmlib import *
import os

NAME = "interleave_layers__mha_block__mixer_channel_mlp__prompt"
S, D, H, DH, F = 2048, 640, 32, 20, 1536
BLK = 40960
BLKH = 98304

def _al(x, a=4096): return (x + a - 1) // a * a
WT_QKV = 0
WT_O   = WT_QKV + 60 * BLK
WT_1   = WT_O + 20 * BLK
WT_2   = WT_1 + 48 * BLK
CS_QKV = WT_2 + 20 * BLKH
CS_1   = CS_QKV + 7680
XA     = _al(CS_1 + 6144)
XB     = XA + 64 * BLK
STA    = XB + 64 * BLK
STB    = STA + 2048 * 64
QB     = STB + 2048 * 64
KB     = QB + 64 * BLK
VB     = _al(KB + 70 * BLK)
VB_SZ  = 32 * 128 * 672
OB     = _al(VB + VB_SZ + 16 * 672)
HB     = OB + 64 * BLK
WS_END = HB + 64 * BLKH
WS_BYTES = 0x10000000

KA_X, KA_WQKV, KA_WO, KA_BX, KA_W1, KA_B1, KA_W2, KA_B2, KA_OUT, KA_DBG, KA_WS = [8 * i for i in range(11)]

QSCALE = (20 ** -0.5) * 1.4426950408889634

import struct
def f2u(x): return struct.unpack("<I", struct.pack("<f", x))[0]
def fhex(x): return "0x%08x" % f2u(x)

def srd(a, d, base, nbytes):
    if d != base:
        a(f"s_mov_b32 s{d}, s{base}")
        a(f"s_mov_b32 s{d+1}, s{base+1}")
    a(f"s_mov_b32 s{d+2}, {hex(nbytes)}")
    a(f"s_mov_b32 s{d+3}, 0x00020000")

def kernel_text(name, a, vgpr, sgpr=96):
    n = a.pad()
    t = f".globl {name}\n.p2align 8\n.type {name},@function\n{name}:\n" + a.text()
    return t

def descriptor(name, vgpr, sgpr=96, acc=None):
    if acc is None: acc = min(256, (vgpr + 3) // 4 * 4)
    return f""".amdhsa_kernel {name}
  .amdhsa_next_free_vgpr {vgpr}
  .amdhsa_next_free_sgpr {sgpr}
  .amdhsa_accum_offset {acc}
  .amdhsa_group_segment_fixed_size 0
  .amdhsa_kernarg_size 88
  .amdhsa_user_sgpr_count 2
  .amdhsa_user_sgpr_kernarg_segment_ptr 1
  .amdhsa_system_sgpr_workgroup_id_x 1
.end_amdhsa_kernel
"""

PROF = bool(int(os.environ.get("PROF", "0"))) if True else False
TS = 0x0C000000
KID = {'p0': 0, 'qkv': 1, 'att': 2, 'wo': 3, 'w1': 4, 'w2a': 5, 'w2b': 6}
def stamp(a, k, wait=True):
    if not PROF: return
    a(f"s_memtime s[{64+2*k}:{65+2*k}]")
    if wait: a("s_waitcnt lgkmcnt(0)")
def stamp_rt(a, k):
    if not PROF: return
    a(f"s_memrealtime s[{64+2*k}:{65+2*k}]")
    a("s_waitcnt lgkmcnt(0)")
def stamp_flush(a, kind, nst, wave_sreg):
    if not PROF: return
    a("s_waitcnt vmcnt(0) lgkmcnt(0)")
    a(f"s_memtime s[{64+2*nst}:{65+2*nst}]")
    a(f"s_memrealtime s[{66+2*nst}:{67+2*nst}]")
    a("s_waitcnt lgkmcnt(0)")
    a("s_lshl_b32 s58, s2, 3")
    a(f"s_add_u32 s58, s58, s{wave_sreg}")
    a("s_lshl_b32 s58, s58, 6")
    a(f"s_add_u32 s58, s58, {TS + KID[kind]*0x40000}")
    a("s_mov_b64 exec, 1")
    a("v_mov_b32 v2, 0")
    for k in range(nst + 2):
        a(f"v_mov_b32 v3, s{64+2*k}")
        a(f"buffer_store_dword v3, v2, s[4:7], s58 offen offset:{4*k}")
        a("s_waitcnt vmcnt(0)")
```

```python
from asmlib import *
import os, struct

NAME = "interleave_layers__mha_block__mixer_channel_mlp__prompt"
S, D, H, DH, F = 2048, 640, 32, 20, 1536

def _al(x, a=4096): return (x + a - 1) // a * a
FS640 = 20480
FS1536 = 49152
FSQK = 40960
BS = {'wo': 5, 'w1': 12, 'w2': 5, 'qkv': 15}
KS = {'wo': 20, 'w1': 20, 'w2': 48, 'qkv': 20}
SOFF = {}
_o = 0
for _p in ('wo', 'w1', 'w2', 'qkv'):
    SOFF[_p] = _o; _o += BS[_p] * KS[_p] * 1024
STREAM = _o
WS     = 0
CS_QKV = WS + 8 * STREAM
CS_1   = CS_QKV + 1920 * 4
FLAGS  = _al(CS_1 + 1536 * 4)
XA0    = FLAGS + 8 * 4096
XA1    = XA0 + 128 * FS640
XB     = XA1 + 128 * FS640
XB2    = XB + 128 * FS640
ST0    = XB2 + 128 * FS640
ST1    = ST0 + 128 * 1024
ST2    = ST1 + 128 * 1024
ST3    = ST2 + 128 * 1024
QK     = ST3 + 128 * 1024
VB     = _al(QK + 128 * FSQK + 4 * FSQK)
VB_SZ  = 32 * 128 * 672
OB     = _al(VB + VB_SZ + 16 * 672)
HB     = OB + 128 * FS640
HB2    = HB + 128 * FS1536
WS_END = HB2 + 128 * FS1536
WS_BYTES = 0x10000000

KA_X, KA_WQKV, KA_WO, KA_BX, KA_W1, KA_B1, KA_W2, KA_B2, KA_OUT, KA_DBG, KA_WS = [8 * i for i in range(11)]

QSCALE = (20 ** -0.5) * 1.4426950408889634

def f2u(x): return struct.unpack("<I", struct.pack("<f", x))[0]
def fhex(x): return "0x%08x" % f2u(x)

def srd(a, d, base, nbytes):
    if d != base:
        a(f"s_mov_b32 s{d}, s{base}")
        a(f"s_mov_b32 s{d+1}, s{base+1}")
    a(f"s_mov_b32 s{d+2}, {hex(nbytes)}")
    a(f"s_mov_b32 s{d+3}, 0x00020000")

def kernel_text(name, a):
    a.pad()
    return f".globl {name}\n.p2align 8\n.type {name},@function\n{name}:\n" + a.text()

def descriptor(name, vgpr, sgpr=96, acc=None):
    if acc is None: acc = min(256, (vgpr + 3) // 4 * 4)
    return f""".amdhsa_kernel {name}
  .amdhsa_next_free_vgpr {vgpr}
  .amdhsa_next_free_sgpr {sgpr}
  .amdhsa_accum_offset {acc}
  .amdhsa_group_segment_fixed_size 0
  .amdhsa_kernarg_size 88
  .amdhsa_user_sgpr_count 2
  .amdhsa_user_sgpr_kernarg_segment_ptr 1
  .amdhsa_system_sgpr_workgroup_id_x 1
.end_amdhsa_kernel
"""

PROF = bool(int(os.environ.get("PROF", "0")))
TS = 0x0C000000
KID = {'p0': 0, 'c0': 1, 'att': 2, 'c1': 3, 'c2': 4}
SB = 60
def stamp(a, k):
    if not PROF: return
    a(f"s_memtime s[{SB+2*k}:{SB+2*k+1}]")
    a("s_waitcnt lgkmcnt(0)")
def stamp_nw(a, k):
    if not PROF: return
    a(f"s_memtime s[{SB+2*k}:{SB+2*k+1}]")
def stamp_rt(a, k):
    if not PROF: return
    a(f"s_memrealtime s[{SB+2*k}:{SB+2*k+1}]")
    a("s_waitcnt lgkmcnt(0)")
def stamp_flush(a, kind, nst, wave_sreg, tmp=58):
    if not PROF: return
    a("s_waitcnt vmcnt(0) lgkmcnt(0)")
    a(f"s_memtime s[{SB+2*nst}:{SB+2*nst+1}]")
    a(f"s_memrealtime s[{SB+2+2*nst}:{SB+3+2*nst}]")
    a("s_waitcnt lgkmcnt(0)")
    a(f"s_lshl_b32 s{tmp}, s2, 3")
    a(f"s_add_u32 s{tmp}, s{tmp}, s{wave_sreg}")
    a(f"s_lshl_b32 s{tmp}, s{tmp}, 7")
    a(f"s_add_u32 s{tmp}, s{tmp}, {TS + KID[kind]*0x40000}")
    a("s_mov_b64 exec, 1")
    a("v_mov_b32 v2, 0")
    for k in range(nst + 2):
        a(f"v_mov_b32 v3, s{SB+2*k}")
        a(f"buffer_store_dword v3, v2, s[4:7], s{tmp} offen offset:{4*k}")
        a("s_waitcnt vmcnt(0)")
```

```python
from common import *

Q0 = [8, 16]; Q1 = [12, 20]
SS = [24, 40]; PP = [56, 64]; OO = [72, 88]
RING = 104
def K0(r): return RING + 16*r
def K1(r): return RING + 16*r + 4
def V0(r): return RING + 16*r + 8
def V1(r): return RING + 16*r + 12
def R4(x): return f"v[{x}:{x+3}]"
def R16(x): return f"v[{x}:{x+15}]"

def m_s(a, x, r, part):
    if part == 0:
        a(f"v_mfma_f32_32x32x16_bf16 {R16(SS[x])}, {R4(K0(r))}, {R4(Q0[x])}, 0")
    else:
        a(f"v_mfma_f32_32x32x16_bf16 {R16(SS[x])}, {R4(K1(r))}, {R4(Q1[x])}, {R16(SS[x])}")

def m_pv(a, x, r, part):
    v = V0(r) if part == 0 else V1(r)
    a(f"v_mfma_f32_32x32x16_bf16 {R16(OO[x])}, {R4(v)}, {R4(PP[x] + 4*part)}, {R16(OO[x])}")

def valu_seq(x):
    s = SS[x]; p = PP[x]
    seq = []
    e = lambda q: seq.append(f"v_exp_f32 v{s+q}, v{s+q}")
    c = lambda q: seq.append(f"v_cvt_pk_bf16_f32 v{p+q}, v{s+2*q}, v{s+2*q+1}")
    e(0); e(1); e(2); e(3); c(0); c(1)
    for g in range(1, 4):
        e(4*g); e(4*g+1); e(4*g+2); e(4*g+3); c(2*g); c(2*g+1)
    return seq

def loads(r):
    return [
        f"buffer_load_dwordx4 {R4(K0(r))}, v2, s[4:7], s15 offen",
        f"buffer_load_dwordx2 v[{K1(r)}:{K1(r)+1}], v3, s[4:7], s15 offen",
        f"buffer_load_dwordx4 {R4(V0(r))}, v4, s[4:7], s16 offen",
        f"buffer_load_dwordx4 {R4(V1(r))}, v4, s[4:7], s16 offen offset:672",
    ]

def phase(a, xv, xm, r, extra):
    seq = valu_seq(xv)
    ms = [lambda: m_s(a, xm, r, 0), lambda: m_s(a, xm, r, 1), lambda: m_pv(a, xm, r, 0), lambda: m_pv(a, xm, r, 1)]
    for g in range(4):
        ms[g]()
        for t in extra[g]: a(t)
        for t in seq[6*g:6*g+6]: a(t)

def setm(a, x, mreg):
    a(f"v_sub_f32 v{mreg}, 0, v{mreg}")
    a(f"v_cvt_pk_bf16_f32 v{mreg}, v{mreg}, 0")
    a(f"v_and_b32 v{mreg}, 0xffff, v{mreg}")
    a("s_mov_b32 exec_hi, 0")
    a(f"v_mov_b32 v{Q1[x]+2}, v{mreg}")
    a("s_mov_b32 exec_hi, -1")

def halfmax(a, reg, tmp):
    a(f"v_mov_b32 v{tmp}, v{reg}")
    a(f"v_permlane32_swap_b32 v{reg}, v{tmp}")
    a(f"v_max_f32 v{reg}, v{reg}, v{tmp}")

def gen_att():
    a = Asm()
    a("s_cmp_ge_u32 s2, 256")
    a("s_cbranch_scc1 ATT_end")
    stamp_rt(a, 0); stamp(a, 1)
    a("s_load_dwordx2 s[4:5], s[0:1], 80")
    a("v_lshrrev_b32 v1, 6, v0")
    a("v_readfirstlane_b32 s12, v1")
    a("v_and_b32 v1, 63, v0")
    a(f"s_mov_b32 s6, {hex(WS_BYTES)}")
    a("s_mov_b32 s7, 0x00020000")
    a("s_and_b32 s13, s2, 7")
    a("s_lshl_b32 s13, s13, 2")
    a("s_lshr_b32 s14, s2, 3")
    a("s_and_b32 s17, s14, 3")
    a("s_add_u32 s13, s13, s17")
    a("s_lshr_b32 s14, s2, 5")
    a("s_lshr_b32 s17, s13, 1")
    a("s_and_b32 s18, s13, 1")
    a("s_mul_i32 s17, s17, 5")
    a("s_mul_i32 s19, s18, 3")
    a("s_add_u32 s19, s19, s17")
    a("s_lshl_b32 s19, s19, 8")
    a("s_add_u32 s17, s17, 2")
    a("s_lshl_b32 s17, s17, 8")
    a("s_lshl_b32 s18, s18, 3")
    a("s_add_u32 s17, s17, s18")
    a("v_and_b32 v6, 15, v1")
    a("v_lshlrev_b32 v6, 4, v6")
    a("v_bfe_u32 v7, v1, 4, 1")
    a("v_lshrrev_b32 v4, 5, v1")
    a("v_lshlrev_b32 v5, 8, v4")
    a("v_add_u32 v5, v5, v6")
    a("v_add_u32 v5, s19, v5")
    a("v_add_u32 v6, s17, v6")
    a(f"v_mul_u32_u24 v2, {FSQK}, v7")
    a("v_add_u32 v3, v2, v6")
    a("v_add_u32 v2, v2, v5")
    a(f"v_mul_u32_u24 v7, {FS640}, v7")
    a("v_add_u32 v168, v7, v5")
    a("v_add_u32 v169, v7, v6")
    a("v_and_b32 v5, 31, v1")
    a("v_min_u32 v5, 20, v5")
    a("v_lshlrev_b32 v5, 4, v5")
    a("v_mul_u32_u24 v4, 336, v4")
    a("v_add_u32 v4, v4, v5")
    a("s_lshl_b32 s22, s14, 4")
    a("s_lshl_b32 s17, s12, 2")
    a("s_add_u32 s22, s22, s17")
    a(f"s_mul_i32 s24, s22, {FS640}")
    a(f"s_add_u32 s24, s24, {OB}")
    a(f"s_add_u32 s25, s24, {2*FS640}")
    a(f"s_mul_i32 s22, s22, {FSQK}")
    a(f"s_add_u32 s22, s22, {QK}")
    a(f"s_add_u32 s23, s22, {2*FSQK}")
    a(f"s_mul_i32 s26, s13, {128*672}")
    a(f"s_add_u32 s26, s26, {VB}")
    for x in range(2):
        for q in range(4): a(f"v_mov_b32 v{Q1[x]+q}, 0")
    for r in range(4):
        a(f"v_mov_b32 v{K1(r)+2}, 0x3f803f80")
        a(f"v_mov_b32 v{K1(r)+3}, 0")
    a("s_mov_b32 s21, 0")
    a("s_waitcnt lgkmcnt(0)")
    for x in range(2):
        a(f"buffer_load_dwordx4 {R4(Q0[x])}, v2, s[4:7], s{22+x} offen")
    a("s_mov_b32 exec_hi, 0")
    for x in range(2):
        a(f"buffer_load_dwordx2 v[{Q1[x]}:{Q1[x]+1}], v3, s[4:7], s{22+x} offen")
    a("s_mov_b32 exec_hi, -1")
    a.lab("ATT_start")
    a(f"s_mov_b32 s15, {QK + 20480}")
    a("s_mov_b32 s16, s26")
    l3 = loads(3)
    a(l3[0]); a(l3[1])
    a(f"s_add_u32 s15, s15, {2*FSQK}")
    for r in range(3):
        for t in loads(r): a(t)
        a(f"s_add_u32 s15, s15, {2*FSQK}")
        a("s_add_u32 s16, s16, 1344")
    a("s_waitcnt vmcnt(12)")
    a("s_cmp_lg_u32 s21, 0")
    a("s_cbranch_scc1 ATT_havem")
    for x in range(2):
        m_s(a, x, 3, 0); m_s(a, x, 3, 1)
    for x in range(2):
        s = SS[x]
        a(f"v_max3_f32 v{6+x}, v{s}, v{s+1}, v{s+2}")
        for q in range(3, 15, 2):
            a(f"v_max3_f32 v{6+x}, v{6+x}, v{s+q}, v{s+q+1}")
        a(f"v_max_f32 v{6+x}, v{6+x}, v{s+15}")
    for x in range(2):
        halfmax(a, 6+x, 5)
        setm(a, x, 6+x)
    a.lab("ATT_havem")
    a("s_nop 1")
    for x in range(2):
        m_s(a, x, 3, 0); m_s(a, x, 3, 1)
    for x in range(2):
        for q in range(16): a(f"v_mov_b32 v{OO[x]+q}, 0")
    for t in valu_seq(0): a(t)
    a("s_mov_b32 s20, 16")
    stamp(a, 2)
    a.lab("ATT_loop")
    for r in range(4):
        L = loads((r + 3) % 4)
        a("s_waitcnt vmcnt(8)")
        phase(a, 1, 0, r, [[], [L[0]], [], [L[1], f"s_add_u32 s15, s15, {2*FSQK}"]])
        phase(a, 0, 1, r, [[], [L[2]], [], [L[3], "s_add_u32 s16, s16, 1344"]])
    a("s_sub_u32 s20, s20, 1")
    a("s_cmp_lg_u32 s20, 0")
    a("s_cbranch_scc1 ATT_loop")
    stamp(a, 3)
    a("s_nop 7"); a("s_nop 3")
    a(f"s_mov_b32 s17, {fhex(2.0**40)}")
    a(f"v_mov_b32 v5, s17")
    a(f"v_cmp_nlt_f32 s[18:19], v{OO[0]+12}, v5")
    a(f"v_cmp_nlt_f32 vcc, v{OO[1]+12}, v5")
    a("s_nop 3")
    a("s_or_b64 vcc, vcc, s[18:19]")
    a("s_cbranch_vccz ATT_fin")
    a("s_cmp_lg_u32 s21, 0")
    a("s_cbranch_scc1 ATT_fin")
    a("s_mov_b32 s21, 1")
    a("s_waitcnt vmcnt(0)")
    a("s_mov_b32 exec_hi, 0")
    for x in range(2): a(f"v_mov_b32 v{Q1[x]+2}, 0")
    a("s_mov_b32 exec_hi, -1")
    a(f"v_mov_b32 v6, {fhex(-3.0e38)}")
    a(f"v_mov_b32 v7, {fhex(-3.0e38)}")
    a(f"s_mov_b32 s15, {QK + 20480}")
    a("s_mov_b32 s20, 64")
    a.lab("ATT_fb")
    a(l3[0]); a(l3[1])
    a(f"s_add_u32 s15, s15, {2*FSQK}")
    a("s_waitcnt vmcnt(0)")
    for x in range(2):
        m_s(a, x, 3, 0); m_s(a, x, 3, 1)
    for x in range(2):
        s = SS[x]
        for q in range(0, 16, 2):
            a(f"v_max3_f32 v{6+x}, v{6+x}, v{s+q}, v{s+q+1}")
    a("s_sub_u32 s20, s20, 1")
    a("s_cmp_lg_u32 s20, 0")
    a("s_cbranch_scc1 ATT_fb")
    for x in range(2):
        halfmax(a, 6+x, 5)
        setm(a, x, 6+x)
    a("s_branch ATT_start")
    a.lab("ATT_fin")
    for x in range(2):
        o = OO[x]
        a(f"v_rcp_f32 v{6+x}, v{o+12}")
    for x in range(2):
        o = OO[x]
        for q in range(12): a(f"v_mul_f32 v{o+q}, v{o+q}, v{6+x}")
    for x in range(2):
        o = OO[x]; t = 24 + 8*x
        for q in range(6): a(f"v_cvt_pk_bf16_f32 v{t+q}, v{o+2*q}, v{o+2*q+1}")
    for x in range(2):
        t = 24 + 8*x
        a(f"v_permlane32_swap_b32 v{t}, v{t+2}")
        a(f"v_permlane32_swap_b32 v{t+1}, v{t+3}")
    for x in range(2):
        t = 24 + 8*x
        a(f"buffer_store_dwordx4 v[{t}:{t+3}], v168, s[4:7], s{24+x} offen")
    a("s_mov_b32 exec_hi, 0")
    for x in range(2):
        t = 24 + 8*x
        a(f"buffer_store_dwordx2 v[{t+4}:{t+5}], v169, s[4:7], s{24+x} offen")
    stamp_flush(a, 'att', 4, 12)
    a.lab("ATT_end")
    a("s_endpgm")
    return a
```

```python
from common import *

RING_A = 0; A_SLOT = 8192; NA = 6
RING_B = 49152; RB_SZ = 112640
STAT = 161792
CH_LDS = 163840
POLL_LIMIT = 20000

class Plan:
    def __init__(self, phases):
        self.ph = phases
        b = 0
        for p in phases:
            k = p['kind']
            p['n'] = KS[k] // 2
            p['bs'] = BS[k]
            p['slot'] = BS[k] * 1024
            p['ns'] = RB_SZ // p['slot']
            p['base'] = b
            b += p['n'] + 1
        self.nbar = b
        self.sched_b()

    def kaddr(self, p, j):
        return RING_B + ((j + p['rot']) % p['ns']) * p['slot']

    def sched_b(self):
        nkb = RB_SZ // 1024
        freet = [-1] * nkb
        lastready = [-1, -1]
        for p in self.ph:
            best = None
            for rot in range(p['ns']):
                f = list(freet); lr = list(lastready); items = []
                for j in range(2 * p['n']):
                    s0 = ((j + rot) % p['ns']) * p['bs']
                    r = max(f[s0:s0 + p['bs']])
                    r = max(r, lr[j & 1]); lr[j & 1] = r
                    fr = p['base'] + j // 2 + 1
                    for q in range(s0, s0 + p['bs']): f[q] = fr
                    items.append(r)
                cost = sum(items)
                if best is None or cost < best[0]: best = (cost, rot, f, lr, items)
            _, p['rot'], freet, lastready, p['ready'] = best
            for j, r in enumerate(p['ready']):
                assert r < p['base'] + j // 2, (p['kind'], j, r)

    def show(self):
        for p in self.ph:
            print(p['kind'], 'base', p['base'], 'n', p['n'], 'ns', p['ns'], 'rot', p['rot'], 'ready', p['ready'])


S_W, S_G, S_NT = 20, 21, 22
V_L = 1
VA, VB0, VB1 = 2, 3, 4
V_ST, V_RES = 5, 6
XR = 10
ACC = 20
OPB = 84
PRE = 180
TMP = 204

def R4(x): return f"v[{x}:{x+3}]"
def R2(x): return f"v[{x}:{x+1}]"

class Em:
    def __init__(self, a, plan):
        self.a = a; self.plan = plan; self.nb = 0
    def bar(self, idx):
        assert idx == self.nb, (idx, self.nb)
        self.a("s_barrier"); self.nb += 1

def lds_rd(a, dst, areg_lo, addr):
    if addr < 65536: a(f"ds_read_b128 {R4(dst)}, v{areg_lo} offset:{addr}")
    else: a(f"ds_read_b128 {R4(dst)}, v{areg_lo+1} offset:{addr-65536}")

def a_addr(s, tf, ks): return RING_A + (s % NA) * A_SLOT + tf * 2048 + ks * 1024

def b_loader(a, plan, b, L, kid):
    E = Em(a, plan)
    a.lab(f"{L}_bl{b}")
    a(f"s_mul_i32 s23, s{S_NT}, {STREAM}")
    a(f"v_lshlrev_b32 v2, 4, v{V_L}")
    a("v_add_u32 v2, s23, v2")
    items = []
    for p in plan.ph:
        for j in range(b, 2 * p['n'], 2):
            items.append(dict(p=p, j=j, ready=p['ready'][j], due=p['base'] + j // 2))
    st = dict(issued=0, landed=0, nxt=0)
    def issue(it):
        p = it['p']; j = it['j']
        g0 = WS + SOFF[p['kind']] + j * p['slot']
        l0 = plan.kaddr(p, j)
        for q0 in range(0, p['bs'], 4):
            k = min(4, p['bs'] - q0)
            if st['issued'] + k - st['landed'] > 63:
                a(f"s_waitcnt vmcnt({63 - k})"); st['landed'] = st['issued'] - (63 - k)
            a(f"s_mov_b32 m0, {hex(l0 + q0 * 1024)}")
            a(f"s_mov_b32 s24, {hex(g0 + q0 * 1024)}")
            for q in range(k):
                a(f"buffer_load_dwordx4 v2, s[4:7], s24 offen offset:{q*1024} lds")
            st['issued'] += k
        it['end'] = st['issued']
    def issue_ready(bar):
        while st['nxt'] < len(items) and items[st['nxt']]['ready'] <= bar:
            issue(items[st['nxt']]); st['nxt'] += 1
    stamp(a, 2)
    issue_ready(-1)
    stamp(a, 3)
    for bar in range(plan.nbar):
        due = [it for it in items if it['due'] == bar]
        if due:
            e = max(it['end'] for it in due)
            if e > st['landed']:
                n = st['issued'] - e
                a(f"s_waitcnt vmcnt({min(63, n)})"); st['landed'] = st['issued'] - min(63, n)
        E.bar(bar)
        issue_ready(bar)
        for i, p in enumerate(plan.ph):
            if bar == p['base'] + p['n']: stamp(a, 4 + i)
    assert st['nxt'] == len(items)
    stamp_flush(a, kid, 4 + len(plan.ph), S_W)
    a("s_endpgm")

def a_loader(a, plan, L, kid):
    E = Em(a, plan)
    a.lab(f"{L}_al")
    a(f"s_sub_u32 s23, s{S_W}, 6")
    a("s_lshl_b32 s25, s23, 12")
    a(f"v_lshlrev_b32 v4, 4, v{V_L}")
    a(f"s_lshl_b32 s26, s{S_G}, 2")
    a("s_lshl_b32 s27, s23, 1")
    a("s_add_u32 s26, s26, s27")
    a(f"v_and_b32 v5, 31, v{V_L}")
    a("v_lshlrev_b32 v5, 2, v5")
    a(f"s_lshl_b32 s27, s{S_G}, 7")
    a("v_add_u32 v5, s27, v5")
    a(f"v_and_b32 v6, 15, v{V_L}")
    a("v_lshlrev_b32 v6, 2, v6")
    a("s_lshl_b32 s27, s23, 7")
    a(f"s_add_u32 s27, s27, {STAT}")
    a("v_add_u32 v6, s27, v6")
    a("s_lshl_b32 s27, s26, 10")
    a("v_add_u32 v7, s27, v4")
    stamp(a, 2)
    for ip, p in enumerate(plan.ph):
        fs = p['fs']; n = p['n']; base = p['base']
        sc = " sc1" if p.get('poll') is not None else ""
        a(f"s_mul_i32 s27, s26, {fs}")
        a("v_add_u32 v2, s27, v4")
        a(f"v_add_u32 v3, {fs - 2048}, v2")
        if p.get('poll') is not None:
            a(f"s_mov_b32 s28, {hex(FLAGS + p['poll'] * 4096)}")
            a(f"s_mov_b32 s29, {POLL_LIMIT}")
            a.lab(f"{L}_poll{ip}")
            a("buffer_load_dword v8, v5, s[4:7], s28 offen sc1")
            a("s_sub_u32 s29, s29, 1")
            a("s_waitcnt vmcnt(0)")
            a("v_cmp_ne_u32 vcc, 1, v8")
            a("s_cmp_eq_u32 s29, 0")
            a(f"s_cbranch_scc1 {L}_pollx{ip}")
            a("s_nop 1")
            a(f"s_cbranch_vccnz {L}_poll{ip}")
            a.lab(f"{L}_pollx{ip}")
        stamp(a, 3 + 2 * ip) if ip < 4 else None
        issued = 0; landed = 0
        if p.get('st') is not None:
            a(f"s_mov_b32 s28, {hex(p['st'])}")
            a(f"buffer_load_dwordx4 v[8:11], v7, s[4:7], s28 offen{sc}")
            a(f"buffer_load_dwordx4 v[12:15], v7, s[4:7], s28 offen offset:1024{sc}")
            issued += 2
        ends = {}
        def issue(s):
            nonlocal issued
            a(f"s_add_u32 m0, s25, {hex(RING_A + (s % NA) * A_SLOT)}")
            a(f"s_mov_b32 s28, {hex(p['A'] + s * 2048)}")
            for q in range(4):
                v = 2 if q < 2 else 3
                a(f"buffer_load_dwordx4 v{v}, s[4:7], s28 offen offset:{q*1024}{sc} lds")
            issued += 4; ends[s] = issued
        for s in range(min(NA, n)): issue(s)
        for s in range(n + 1):
            if s < n:
                a(f"s_waitcnt vmcnt({issued - ends[s]})")
            if s == 1 and p.get('st') is not None:
                a("s_waitcnt lgkmcnt(0)")
            E.bar(base + s)
            if s == 0:
                stamp(a, 4 + 2 * ip) if ip < 4 else None
            if s >= 1 and s - 1 + NA < n: issue(s - 1 + NA)
            if s == 0 and p.get('st') is not None:
                a("v_add_f32 v8, v8, v10"); a("v_add_f32 v9, v9, v11")
                a("v_add_f32 v12, v12, v14"); a("v_add_f32 v13, v13, v15")
                for sw in ("v_permlane16_swap_b32", "v_permlane32_swap_b32"):
                    for r in (8, 9, 12, 13): a(f"v_mov_b32 v{r+8}, v{r}")
                    for r in (8, 9, 12, 13): a(f"{sw} v{r}, v{r+8}")
                    for r in (8, 9, 12, 13): a(f"v_add_f32 v{r}, v{r}, v{r+8}")
                for r in (8, 12):
                    a(f"v_mul_f32 v{r}, {fhex(1.0/640)}, v{r}")
                    a(f"v_mul_f32 v{r+1}, {fhex(1.0/640)}, v{r+1}")
                for r in (8, 12):
                    a(f"v_fma_f32 v{r+1}, -v{r}, v{r}, v{r+1}")
                for r in (8, 12):
                    a(f"v_max_f32 v{r+1}, 0, v{r+1}")
                for r in (8, 12):
                    a(f"v_add_f32 v{r+2}, {fhex(1e-5)}, v{r+1}")
                for r in (8, 12):
                    a(f"v_rsq_f32 v{r+2}, v{r+2}")
                if p['kind'] == 'w1':
                    for r in (8, 12): a(f"v_mul_f32 v{r+3}, v{r+2}, v{r+2}")
                    for r in (8, 12): a(f"v_mul_f32 v{r+3}, v{r+1}, v{r+3}")
                    for r in (8, 12): a(f"v_add_f32 v{r+3}, {fhex(1e-5)}, v{r+3}")
                    for r in (8, 12): a(f"v_rsq_f32 v{r+3}, v{r+3}")
                    for r in (8, 12): a(f"v_mul_f32 v{r+2}, v{r+2}, v{r+3}")
                for r in (8, 12): a(f"v_mul_f32 v{r+3}, v{r}, v{r+2}")
                a("s_mov_b64 exec, 0xffff")
                a("ds_write_b32 v6, v10")
                a("ds_write_b32 v6, v11 offset:256")
                a("ds_write_b32 v6, v14 offset:64")
                a("ds_write_b32 v6, v15 offset:320")
                a("s_mov_b64 exec, -1")
    stamp_flush(a, kid, 3 + 2 * min(4, len(plan.ph)), S_W)
    a("s_endpgm")

def mm(a, c, A, B, first, swap=False):
    if swap: A, B = B, A
    src = "0" if first else R4(c)
    a(f"v_mfma_f32_16x16x32_bf16 {R4(c)}, {R4(A)}, {R4(B)}, {src}")

def loop_4xN(a, E, plan, p, N, swaps):
    n = p['n']; base = p['base']
    def Wr(b, ff): return OPB + 32 * b + 4 * ff
    def Xr(b, tf): return OPB + 32 * b + 16 + 4 * tf
    def reads(j):
        b = j & 1; s = j // 2; ks = j & 1
        ka = plan.kaddr(p, j) - RING_B
        order = [('W', 0), ('X', 0)] + [('W', i) for i in range(1, N)] + [('X', i) for i in range(1, 4)]
        out = []
        for t, i in order:
            if t == 'W': out.append((Wr(b, i), VB0, ka + i * 1024))
            else: out.append((Xr(b, i), VA, a_addr(s, i, ks)))
        return out
    E.bar(base)
    for d, r, ad in reads(0): lds_rd(a, d, r, ad)
    for j in range(2 * n):
        b = j & 1
        rds = reads(j + 1) if j + 1 < 2 * n else []
        a("s_waitcnt lgkmcnt(0)")
        m = 0
        for tf in range(4):
            for ff in range(N):
                mm(a, ACC + (tf * N + ff) * 4, Wr(b, ff), Xr(b, tf), j == 0, swaps[ff])
                if m == 0 and (j & 1): E.bar(base + (j + 1) // 2)
                if rds:
                    d, r, ad = rds.pop(0); lds_rd(a, d, r, ad)
                m += 1
        assert not rds

def loop_1x5(a, E, plan, p):
    n = p['n']; base = p['base']
    def Rg(b, k, i): return OPB + 48 * b + 24 * k + 4 * i
    def reads(s):
        b = s & 1; out = []
        for k in range(2):
            ka = plan.kaddr(p, 2 * s + k) - RING_B
            out.append((Rg(b, k, 5), VA, a_addr(s, 0, k)))
            for i in range(5): out.append((Rg(b, k, i), VB0, ka + i * 1024))
        return out
    E.bar(base)
    for d, r, ad in reads(0): lds_rd(a, d, r, ad)
    for s in range(n):
        b = s & 1
        rds = reads(s + 1) if s + 1 < n else []
        a("s_waitcnt lgkmcnt(0)")
        m = 0
        for k in range(2):
            for ff in range(5):
                mm(a, ACC + 4 * ff, Rg(b, k, ff), Rg(b, k, 5), False)
                if m == 0: E.bar(base + s + 1)
                for _ in range(2 if m < 2 else 1):
                    if rds:
                        d, r, ad = rds.pop(0); lds_rd(a, d, r, ad)
                m += 1
        assert not rds

def set_flag(a, sync):
    a(f"s_lshl_b32 s23, s{S_G}, 7")
    a(f"s_lshl_b32 s24, s{S_NT}, 4")
    a("s_add_u32 s23, s23, s24")
    a(f"s_lshl_b32 s24, s{S_W}, 2")
    a("s_add_u32 s23, s23, s24")
    a(f"s_add_u32 s23, s23, {hex(FLAGS + sync * 4096)}")
    a("v_mov_b32 v8, 0")
    a("v_mov_b32 v9, 1")
    a("s_mov_b64 exec, 1")
    a("s_waitcnt vmcnt(0)")
    a("buffer_store_dword v9, v8, s[4:7], s23 offen sc1")
    a("s_mov_b64 exec, -1")

def unpack(a, dst, src, n):
    for q in range(n):
        a(f"v_lshlrev_b32 v{dst+2*q}, 16, v{src+q}")
        a(f"v_and_b32 v{dst+2*q+1}, 0xffff0000, v{src+q}")

def phase_x(a, E, plan, p, ip, st0):
    kind = p['kind']
    a(f"v_lshlrev_b32 v{VB0}, 4, v{V_L}")
    a(f"s_lshl_b32 s23, s{S_W}, 11")
    a(f"v_add_u32 v{VA}, s23, v{VB0}")
    a(f"v_add_u32 v{VB0}, {RING_B}, v{VB0}")
    a(f"v_add_u32 v{VB1}, 0x10000, v{VB0}")
    a(f"s_lshl_b32 s30, s{S_G}, 2")
    a(f"s_add_u32 s30, s30, s{S_W}")
    a(f"s_mul_i32 s30, s30, {FS640}")
    a(f"s_mul_i32 s23, s{S_NT}, 2560")
    a("s_add_u32 s30, s30, s23")
    if kind == 'wo':
        a(f"s_add_u32 s24, s30, {hex(p['res'])}")
        for ff in range(5):
            a(f"buffer_load_dwordx2 {R2(XR+2*ff)}, v{V_RES}, s[4:7], s24 offen offset:{ff*512}")
        a("s_waitcnt vmcnt(0)")
        unpack(a, ACC, XR, 10)
    else:
        a(f"v_lshrrev_b32 v8, 4, v{V_L}")
        a("v_lshlrev_b32 v8, 3, v8")
        a(f"s_mul_i32 s24, s{S_NT}, 160")
        for ff in range(5):
            a(f"buffer_load_dwordx2 {R2(PRE+2*ff)}, v8, s[12:15], s24 offen offset:{ff*32}")
        unpack(a, ACC, XR, 10)
        a("s_waitcnt vmcnt(0)")
        unpack(a, TMP, PRE, 10)
        for q in range(10):
            a(f"v_pk_add_f32 {R2(ACC+2*q)}, {R2(ACC+2*q)}, {R2(TMP+2*q)}")
    stamp(a, st0)
    loop_1x5(a, E, plan, p)
    stamp(a, st0 + 1)
    T = XR
    for ff in range(5):
        a(f"v_cvt_pk_bf16_f32 v{T+2*ff}, v{ACC+4*ff}, v{ACC+4*ff+1}")
        a(f"v_cvt_pk_bf16_f32 v{T+2*ff+1}, v{ACC+4*ff+2}, v{ACC+4*ff+3}")
    if p.get('out') is None:
        a(f"v_and_b32 v8, 15, v{V_L}")
        a("v_mul_u32_u24 v8, 1280, v8")
        a(f"v_lshrrev_b32 v9, 4, v{V_L}")
        a("v_lshlrev_b32 v204, 3, v9")
        a("v_add_u32 v204, v8, v204")
        a("v_and_b32 v205, 1, v9")
        a("v_lshlrev_b32 v205, 5, v205")
        a("v_lshrrev_b32 v9, 1, v9")
        a("v_lshlrev_b32 v9, 4, v9")
        a("v_add_u32 v8, v8, v9")
        a("v_add_u32 v8, v8, v205")
        a(f"s_lshl_b32 s24, s{S_G}, 2")
        a(f"s_add_u32 s24, s24, s{S_W}")
        a(f"s_mul_i32 s24, s24, {16*1280}")
        a(f"s_mul_i32 s23, s{S_NT}, 160")
        a("s_add_u32 s24, s24, s23")
        for pr in range(2):
            a(f"v_permlane16_swap_b32 v{T+4*pr}, v{T+4*pr+2}")
            a(f"v_permlane16_swap_b32 v{T+4*pr+1}, v{T+4*pr+3}")
        for pr in range(2):
            a(f"buffer_store_dwordx4 {R4(T+4*pr)}, v8, s[16:19], s24 offen offset:{pr*64}")
        a(f"buffer_store_dwordx2 {R2(T+8)}, v204, s[16:19], s24 offen offset:128")
        stamp(a, st0 + 2)
        return
    a(f"s_add_u32 s24, s30, {hex(p['out'])}")
    for pr in range(2):
        a(f"v_permlane16_swap_b32 v{T+4*pr}, v{T+4*pr+2}")
        a(f"v_permlane16_swap_b32 v{T+4*pr+1}, v{T+4*pr+3}")
    for pr in range(2):
        a(f"buffer_store_dwordx4 {R4(T+4*pr)}, v{V_ST}, s[4:7], s24 offen offset:{pr*1024} sc1")
    a(f"buffer_store_dwordx2 {R2(T+8)}, v{V_RES}, s[4:7], s24 offen offset:2048 sc1")
    S = TMP; Q = TMP + 2
    a(f"v_pk_add_f32 {R2(S)}, {R2(ACC)}, {R2(ACC+2)}")
    a(f"v_pk_mul_f32 {R2(Q)}, {R2(ACC)}, {R2(ACC)}")
    a(f"v_pk_fma_f32 {R2(Q)}, {R2(ACC+2)}, {R2(ACC+2)}, {R2(Q)}")
    S2 = TMP + 4; Q2 = TMP + 6
    a(f"v_pk_add_f32 {R2(S2)}, {R2(ACC+4)}, {R2(ACC+6)}")
    a(f"v_pk_mul_f32 {R2(Q2)}, {R2(ACC+4)}, {R2(ACC+4)}")
    a(f"v_pk_fma_f32 {R2(Q2)}, {R2(ACC+6)}, {R2(ACC+6)}, {R2(Q2)}")
    for q in range(4, 10):
        s_, q_ = (S, Q) if q % 2 == 0 else (S2, Q2)
        a(f"v_pk_add_f32 {R2(s_)}, {R2(s_)}, {R2(ACC+2*q)}")
        a(f"v_pk_fma_f32 {R2(q_)}, {R2(ACC+2*q)}, {R2(ACC+2*q)}, {R2(q_)}")
    a(f"v_pk_add_f32 {R2(S)}, {R2(S)}, {R2(S2)}")
    a(f"v_pk_add_f32 {R2(Q)}, {R2(Q)}, {R2(Q2)}")
    a(f"v_add_f32 v{TMP+8}, v{S}, v{S+1}")
    a(f"v_add_f32 v{TMP+9}, v{Q}, v{Q+1}")
    for sw in ("v_permlane16_swap_b32", "v_permlane32_swap_b32"):
        a(f"v_mov_b32 v{TMP+10}, v{TMP+8}")
        a(f"v_mov_b32 v{TMP+11}, v{TMP+9}")
        a(f"{sw} v{TMP+8}, v{TMP+10}")
        a(f"{sw} v{TMP+9}, v{TMP+11}")
        a(f"v_add_f32 v{TMP+8}, v{TMP+8}, v{TMP+10}")
        a(f"v_add_f32 v{TMP+9}, v{TMP+9}, v{TMP+11}")
    a(f"s_lshl_b32 s24, s{S_G}, 2")
    a(f"s_add_u32 s24, s24, s{S_W}")
    a("s_lshl_b32 s24, s24, 10")
    a(f"s_lshr_b32 s23, s{S_NT}, 1")
    a("s_lshl_b32 s23, s23, 8")
    a("s_add_u32 s24, s24, s23")
    a(f"s_and_b32 s23, s{S_NT}, 1")
    a("s_lshl_b32 s23, s23, 3")
    a("s_add_u32 s24, s24, s23")
    a(f"s_add_u32 s24, s24, {hex(p['ost'])}")
    a(f"v_and_b32 v8, 15, v{V_L}")
    a("v_lshlrev_b32 v8, 4, v8")
    a("s_mov_b64 exec, 0xffff")
    a(f"buffer_store_dwordx2 {R2(TMP+8)}, v8, s[4:7], s24 offen sc1")
    a("s_mov_b64 exec, -1")
    set_flag(a, p['flag'])
    if kind == 'wo':
        for pr in range(2):
            a(f"v_permlane16_swap_b32 v{T+4*pr}, v{T+4*pr+2}")
            a(f"v_permlane16_swap_b32 v{T+4*pr+1}, v{T+4*pr+3}")
    stamp(a, st0 + 2)

K0 = -2.0 * 1.4426950408889634 * (2.0 / 3.141592653589793) ** 0.5
K1 = K0 * 0.044715

def pk_bc(j): return f"op_sel:[0,{j},0] op_sel_hi:[1,{j},1]"

def read_tokscal(a, R):
    a(f"v_and_b32 v8, 15, v{V_L}")
    a("v_lshlrev_b32 v8, 2, v8")
    a(f"v_add_u32 v8, {STAT}, v8")
    for tf in range(4):
        a(f"ds_read_b32 v{R+tf}, v8 offset:{tf*64}")
    for tf in range(4):
        a(f"ds_read_b32 v{R+4+tf}, v8 offset:{256+tf*64}")

def pair_store_addr(a, vreg, fs):
    a(f"v_lshrrev_b32 v9, 4, v{V_L}")
    a(f"v_and_b32 v{vreg}, 1, v9")
    a(f"s_mov_b32 s23, {fs}")
    a(f"v_mul_lo_u32 v{vreg}, v{vreg}, s23")
    a("v_lshrrev_b32 v9, 1, v9")
    a("v_lshlrev_b32 v9, 8, v9")
    a(f"v_add_u32 v{vreg}, v{vreg}, v9")
    a(f"v_and_b32 v9, 15, v{V_L}")
    a("v_lshlrev_b32 v9, 4, v9")
    a(f"v_add_u32 v{vreg}, v{vreg}, v9")

def phase_w1(a, E, plan, p, ip, st0):
    a(f"v_lshlrev_b32 v{VA}, 4, v{V_L}")
    a(f"s_mul_i32 s23, s{S_W}, 3072")
    a(f"s_add_u32 s23, s23, {RING_B}")
    a(f"v_add_u32 v{VB0}, s23, v{VA}")
    a(f"v_add_u32 v{VB1}, 0x10000, v{VB0}")
    CS = PRE; BI = PRE + 12; VP = PRE + 18
    a(f"v_lshrrev_b32 v8, 4, v{V_L}")
    a("v_lshlrev_b32 v9, 3, v8")
    a("v_lshlrev_b32 v8, 4, v8")
    a(f"s_mul_i32 s23, s{S_NT}, 12")
    a(f"s_mul_i32 s24, s{S_W}, 3")
    a("s_add_u32 s31, s23, s24")
    a("s_lshl_b32 s23, s31, 6")
    a(f"s_add_u32 s23, s23, {hex(CS_1)}")
    a("s_lshl_b32 s24, s31, 5")
    for ff in range(3):
        a(f"buffer_load_dwordx4 {R4(CS+4*ff)}, v8, s[4:7], s23 offen offset:{ff*64}")
    for ff in range(3):
        a(f"buffer_load_dwordx2 {R2(BI+2*ff)}, v9, s[8:11], s24 offen offset:{ff*32}")
    pair_store_addr(a, VP, FS1536)
    a(f"s_mul_i32 s30, s{S_G}, {4*FS1536}")
    a("s_lshl_b32 s23, s31, 9")
    a("s_add_u32 s30, s30, s23")
    a(f"s_add_u32 s30, s30, {hex(p['out'])}")
    a(f"s_add_u32 s29, s30, {2*FS1536}")
    stamp(a, st0)
    loop_4xN(a, E, plan, p, 3, [False] * 3)
    stamp(a, st0 + 1)
    R = OPB
    read_tokscal(a, R)
    BF = OPB + 8
    a("s_waitcnt vmcnt(0)")
    unpack(a, BF, BI, 6)
    KK = OPB + 20
    ONE = OPB + 22
    a(f"v_mov_b32 v{KK}, {fhex(K0)}")
    a(f"v_mov_b32 v{KK+1}, {fhex(K1)}")
    a(f"v_mov_b32 v{ONE}, 1.0")
    a(f"v_mov_b32 v{ONE+1}, 1.0")
    a("s_waitcnt lgkmcnt(0)")
    n = 0
    for ff in range(3):
        for pr in range(2):
            Z = OPB + 24 + 24 * (n & 1); U = Z + 8; T = Z + 16
            for h in range(2):
                tf = 2 * pr + h
                c = ACC + (tf * 3 + ff) * 4
                for q in range(2):
                    a(f"v_pk_fma_f32 {R2(Z+4*h+2*q)}, {R2(CS+4*ff+2*q)}, {R2(R+4+2*pr)}, {R2(BF+4*ff+2*q)} {pk_bc(h)} neg_lo:[0,1,0] neg_hi:[0,1,0]")
            for h in range(2):
                tf = 2 * pr + h
                c = ACC + (tf * 3 + ff) * 4
                for q in range(2):
                    a(f"v_pk_fma_f32 {R2(Z+4*h+2*q)}, {R2(c+2*q)}, {R2(R+2*pr)}, {R2(Z+4*h+2*q)} {pk_bc(h)}")
            for q in range(4): a(f"v_pk_mul_f32 {R2(U+2*q)}, {R2(Z+2*q)}, {R2(Z+2*q)}")
            for q in range(4): a(f"v_pk_fma_f32 {R2(U+2*q)}, {R2(U+2*q)}, {R2(KK)}, {R2(KK)} op_sel:[0,1,0] op_sel_hi:[1,1,0]")
            for q in range(4): a(f"v_pk_mul_f32 {R2(U+2*q)}, {R2(U+2*q)}, {R2(Z+2*q)}")
            for q in range(8): a(f"v_exp_f32 v{U+q}, v{U+q}")
            for q in range(4): a(f"v_pk_add_f32 {R2(U+2*q)}, {R2(U+2*q)}, {R2(ONE)}")
            for q in range(8): a(f"v_rcp_f32 v{U+q}, v{U+q}")
            for q in range(4): a(f"v_pk_mul_f32 {R2(U+2*q)}, {R2(U+2*q)}, {R2(Z+2*q)}")
            for q in range(4): a(f"v_cvt_pk_bf16_f32 v{T+q}, v{U+2*q}, v{U+2*q+1}")
            a(f"v_permlane16_swap_b32 v{T}, v{T+2}")
            a(f"v_permlane16_swap_b32 v{T+1}, v{T+3}")
            a(f"buffer_store_dwordx4 {R4(T)}, v{VP}, s[4:7], s{30 if pr == 0 else 29} offen offset:{ff*512} sc1")
            n += 1
    set_flag(a, p['flag'])
    stamp(a, st0 + 2)

def qk_tiles(a, N, ffs, R, CS, VP):
    n = 0
    for i, ff in enumerate(ffs):
        for pr in range(2):
            Z = TMP + 16 * (n & 1); T = Z + 8
            for h in range(2):
                for q in range(2):
                    a(f"v_pk_mul_f32 {R2(Z+4*h+2*q)}, {R2(CS+4*i+2*q)}, {R2(R+4+2*pr)} op_sel:[0,{h}] op_sel_hi:[1,{h}]")
            for h in range(2):
                c = ACC + ((2 * pr + h) * N + ff) * 4
                for q in range(2):
                    a(f"v_pk_fma_f32 {R2(Z+4*h+2*q)}, {R2(c+2*q)}, {R2(R+2*pr)}, {R2(Z+4*h+2*q)} {pk_bc(h)} neg_lo:[0,0,1] neg_hi:[0,0,1]")
            for q in range(4): a(f"v_cvt_pk_bf16_f32 v{T+q}, v{Z+2*q}, v{Z+2*q+1}")
            a(f"v_permlane16_swap_b32 v{T}, v{T+2}")
            a(f"v_permlane16_swap_b32 v{T+1}, v{T+3}")
            a(f"buffer_store_dwordx4 {R4(T)}, v{VP}, s[4:7], s{30 if pr == 0 else 29} offen offset:{ff*512}")
            n += 1

def v_tiles(a, N, ffs, RV, CV, VV):
    n = 0
    for i, ff in enumerate(ffs):
        for pr in range(2):
            Z = TMP + 16 * (n & 1); T = Z + 8
            j = i & 1; cp = CV + 2 * (i >> 1)
            for h in range(2):
                tf = 2 * pr + h
                for q in range(2):
                    a(f"v_pk_mul_f32 {R2(Z+4*h+2*q)}, {R2(RV+16+4*tf+2*q)}, {R2(cp)} op_sel:[0,{j}] op_sel_hi:[1,{j}]")
            for h in range(2):
                tf = 2 * pr + h
                c = ACC + (tf * N + ff) * 4
                for q in range(2):
                    a(f"v_pk_fma_f32 {R2(Z+4*h+2*q)}, {R2(c+2*q)}, {R2(RV+4*tf+2*q)}, {R2(Z+4*h+2*q)} neg_lo:[0,0,1] neg_hi:[0,0,1]")
            for q in range(4): a(f"v_cvt_pk_bf16_f32 v{T+q}, v{Z+2*q}, v{Z+2*q+1}")
            a(f"v_permlane32_swap_b32 v{T}, v{T+2}")
            a(f"v_permlane32_swap_b32 v{T+1}, v{T+3}")
            a(f"buffer_store_dwordx4 {R4(T)}, v{VV+i}, s[4:7], s28 offen offset:{pr*1344}")
            n += 1

def phase_qkv(a, E, plan, p, ip, st0, L, kid, nst):
    a(f"v_lshlrev_b32 v{VA}, 4, v{V_L}")
    a(f"s_lshl_b32 s23, s{S_W}, 12")
    a(f"s_add_u32 s23, s23, {RING_B}")
    a(f"v_add_u32 v{VB0}, s23, v{VA}")
    a(f"v_add_u32 v{VB1}, 0x10000, v{VB0}")
    a(f"s_mul_i32 s31, s{S_NT}, 15")
    a(f"s_lshl_b32 s23, s{S_W}, 2")
    a("s_add_u32 s31, s31, s23")
    a("s_lshl_b32 s31, s31, 6")
    a(f"s_add_u32 s31, s31, {hex(CS_QKV)}")
    a(f"s_mul_i32 s30, s{S_G}, {4*FSQK}")
    a(f"s_mul_i32 s23, s{S_NT}, 10")
    a(f"s_lshl_b32 s24, s{S_W}, 2")
    a("s_add_u32 s23, s23, s24")
    a("s_lshl_b32 s23, s23, 9")
    a("s_add_u32 s30, s30, s23")
    a(f"s_add_u32 s30, s30, {hex(QK)}")
    a(f"s_add_u32 s29, s30, {2*FSQK}")
    a(f"s_mul_i32 s28, s{S_G}, {4*672}")
    a(f"s_add_u32 s28, s28, {hex(VB)}")
    a(f"s_cmp_lt_u32 s{S_NT}, 4")
    a(f"s_cselect_b32 s27, {fhex(QSCALE)}, 1.0")
    nb0 = E.nb
    variants = [('qk', 4, [0, 1, 2, 3], []), ('mx', 4, [0, 1], [2, 3]), ('vv', 3, [], [0, 1, 2])]
    a(f"s_cmp_eq_u32 s{S_W}, 2")
    a(f"s_cbranch_scc1 {L}_q_mx")
    a(f"s_cmp_eq_u32 s{S_W}, 3")
    a(f"s_cbranch_scc1 {L}_q_vv")
    for name, N, qf, vf in variants:
        E.nb = nb0
        if name != 'qk': a.lab(f"{L}_q_{name}")
        CS = PRE; CV = PRE + 16; VV = PRE + 20; VP = PRE + 23
        if qf:
            a(f"v_lshrrev_b32 v8, 4, v{V_L}")
            a("v_lshlrev_b32 v8, 4, v8")
            for i, ff in enumerate(qf):
                a(f"buffer_load_dwordx4 {R4(CS+4*i)}, v8, s[4:7], s31 offen offset:{ff*64}")
            pair_store_addr(a, VP, FSQK)
        if vf:
            a(f"v_and_b32 v8, 15, v{V_L}")
            a("v_lshlrev_b32 v9, 2, v8")
            for i, ff in enumerate(vf):
                a(f"buffer_load_dword v{CV+i}, v9, s[4:7], s31 offen offset:{ff*64}")
            a(f"v_lshrrev_b32 v9, 5, v{V_L}")
            a("v_mul_u32_u24 v9, 672, v9")
            a(f"v_bfe_u32 v{TMP}, v{V_L}, 4, 1")
            a(f"v_mul_u32_u24 v{TMP}, 336, v{TMP}")
            a(f"v_add_u32 v9, v9, v{TMP}")
            a(f"s_mul_i32 s23, s{S_NT}, 80")
            a(f"s_lshl_b32 s24, s{S_W}, 6")
            a("s_add_u32 s23, s23, s24")
            a("s_sub_u32 s23, s23, 160")
            a("v_add_u32 v8, s23, v8")
            a(f"s_mov_b32 s24, {128*672}")
            for i, ff in enumerate(vf):
                a(f"v_add_u32 v{TMP}, {16*ff}, v8")
                a(f"v_mul_u32_u24 v{TMP+1}, 3277, v{TMP}")
                a(f"v_lshrrev_b32 v{TMP+1}, 16, v{TMP+1}")
                a(f"v_mul_u32_u24 v{TMP+2}, 20, v{TMP+1}")
                a(f"v_sub_u32 v{TMP+2}, v{TMP}, v{TMP+2}")
                a(f"v_lshlrev_b32 v{TMP+2}, 4, v{TMP+2}")
                a(f"v_mul_lo_u32 v{TMP+1}, v{TMP+1}, s24")
                a(f"v_add_u32 v{TMP+1}, v{TMP+1}, v{TMP+2}")
                a(f"v_add_u32 v{VV+i}, v{TMP+1}, v9")
        stamp(a, st0)
        loop_4xN(a, E, plan, p, N, [ff in vf for ff in range(N)])
        stamp(a, st0 + 1)
        R = OPB; RV = OPB + 8
        if qf: read_tokscal(a, R)
        if vf:
            a(f"v_lshrrev_b32 v9, 4, v{V_L}")
            a("v_lshlrev_b32 v9, 4, v9")
            a(f"v_add_u32 v9, {STAT}, v9")
            for tf in range(4):
                a(f"ds_read_b128 {R4(RV+4*tf)}, v9 offset:{tf*64}")
                a(f"ds_read_b128 {R4(RV+16+4*tf)}, v9 offset:{256+tf*64}")
        a("s_waitcnt vmcnt(0) lgkmcnt(0)")
        if qf:
            for q in range(8): a(f"v_mul_f32 v{R+q}, s27, v{R+q}")
            qk_tiles(a, N, qf, R, CS, VP)
        if vf: v_tiles(a, N, vf, RV, CV, VV)
        stamp(a, st0 + 2)
        stamp_flush(a, kid, nst, S_W)
        a("s_endpgm")

def consumer(a, plan, L, kid):
    E = Em(a, plan)
    a(f"v_lshrrev_b32 v8, 4, v{V_L}")
    a("v_and_b32 v9, 1, v8")
    a("v_lshrrev_b32 v8, 1, v8")
    a(f"v_and_b32 v7, 15, v{V_L}")
    a("v_lshlrev_b32 v7, 4, v7")
    a(f"v_lshlrev_b32 v{V_RES}, 8, v8")
    a(f"v_add_u32 v{V_RES}, v{V_RES}, v7")
    a(f"v_lshlrev_b32 v{V_ST}, 9, v9")
    a(f"v_add_u32 v{V_ST}, v{V_ST}, v{V_RES}")
    a("v_lshlrev_b32 v9, 3, v9")
    a(f"v_add_u32 v{V_RES}, v{V_RES}, v9")
    nst = 2 + 3 * len(plan.ph)
    for ip, p in enumerate(plan.ph):
        st0 = 2 + 3 * ip
        if p['kind'] in ('wo', 'w2'): phase_x(a, E, plan, p, ip, st0)
        elif p['kind'] == 'w1': phase_w1(a, E, plan, p, ip, st0)
        else:
            phase_qkv(a, E, plan, p, ip, st0, L, kid, nst)
            assert ip == len(plan.ph) - 1
            assert E.nb == plan.nbar
            return
    assert E.nb == plan.nbar
    stamp_flush(a, kid, nst, S_W)
    a("s_endpgm")

def phases_for(which):
    if which == 'c0':
        return [dict(kind='qkv', A=XA0, fs=FS640, st=ST0)]
    if which == 'c1':
        return [dict(kind='wo', A=OB, fs=FS640, res=XA0, out=XB, ost=ST1, flag=0),
                dict(kind='w1', A=XB, fs=FS640, st=ST1, poll=0, out=HB, flag=1),
                dict(kind='w2', A=HB, fs=FS1536, poll=1, out=XA1, ost=ST2, flag=2),
                dict(kind='qkv', A=XA1, fs=FS640, st=ST2, poll=2)]
    return [dict(kind='wo', A=OB, fs=FS640, res=XA1, out=XB2, ost=ST3, flag=3),
            dict(kind='w1', A=XB2, fs=FS640, st=ST3, poll=3, out=HB2, flag=4),
            dict(kind='w2', A=HB2, fs=FS1536, poll=4, out=None)]

def gen_chain(which):
    L = which.upper()
    plan = Plan(phases_for(which))
    a = Asm()
    a("s_cmp_ge_u32 s2, 256")
    a(f"s_cbranch_scc1 {L}_end")
    stamp_rt(a, 0); stamp(a, 1)
    a("s_load_dwordx2 s[4:5], s[0:1], 80")
    kinds = [p['kind'] for p in plan.ph]
    if 'w1' in kinds: a("s_load_dwordx2 s[8:9], s[0:1], 40")
    if 'w2' in kinds: a("s_load_dwordx2 s[12:13], s[0:1], 56")
    if which == 'c2': a("s_load_dwordx2 s[16:17], s[0:1], 64")
    a("v_lshrrev_b32 v1, 6, v0")
    a(f"v_readfirstlane_b32 s{S_W}, v1")
    a(f"v_and_b32 v{V_L}, 63, v0")
    a(f"s_mov_b32 s6, {hex(WS_BYTES)}")
    a("s_mov_b32 s7, 0x00020000")
    if 'w1' in kinds:
        a("s_mov_b32 s10, 3072"); a("s_mov_b32 s11, 0x00020000")
    if 'w2' in kinds:
        a("s_mov_b32 s14, 1280"); a("s_mov_b32 s15, 0x00020000")
    if which == 'c2':
        a(f"s_mov_b32 s18, {2048*1280}"); a("s_mov_b32 s19, 0x00020000")
    a(f"s_and_b32 s{S_G}, s2, 31")
    a(f"s_lshr_b32 s{S_NT}, s2, 5")
    a("s_waitcnt lgkmcnt(0)")
    a(f"s_cmp_ge_u32 s{S_W}, 6")
    a(f"s_cbranch_scc1 {L}_al")
    a(f"s_cmp_eq_u32 s{S_W}, 4")
    a(f"s_cbranch_scc1 {L}_bl0")
    a(f"s_cmp_eq_u32 s{S_W}, 5")
    a(f"s_cbranch_scc1 {L}_bl1")
    consumer(a, plan, L, which)
    b_loader(a, plan, 0, L, which)
    b_loader(a, plan, 1, L, which)
    a_loader(a, plan, L, which)
    a.lab(f"{L}_end")
    a("s_endpgm")
    return a

if __name__ == "__main__":
    for w in ('c0', 'c1', 'c2'):
        a = gen_chain(w); a.pad(); print(w, len(a.I))
```

```python
from common import *

def p0_weight(a, kind):
    cfg = {
        'qkv': dict(u0=0,   ptr=14, nbytes=640*3840,  stride=3840, nsteps=10, cs=CS_QKV),
        'wo':  dict(u0=60,  ptr=16, nbytes=640*1280,  stride=1280, nsteps=10, cs=None),
        'w1':  dict(u0=80,  ptr=18, nbytes=640*3072,  stride=3072, nsteps=10, cs=CS_1),
        'w2':  dict(u0=128, ptr=20, nbytes=1536*1280, stride=1280, nsteps=12, cs=None),
    }[kind]
    st = cfg['stride']; ns = cfg['nsteps']; bs = BS[kind] * 1024
    a.lab(f"P0_{kind}")
    a(f"s_sub_u32 s23, s2, {cfg['u0']}")
    srd(a, 8, cfg['ptr'], cfg['nbytes'])
    if kind == 'w2':
        a("s_lshr_b32 s26, s23, 1")
        a("s_and_b32 s27, s23, 1")
        a("s_lshl_b32 s24, s26, 6")
        a(f"s_mul_i32 s28, s27, {768*1280}")
        a("s_add_u32 s24, s24, s28")
        a(f"s_mul_i32 s25, s27, {24*bs}")
        a(f"s_add_u32 s25, s25, {WS + SOFF[kind]}")
    else:
        a("s_mov_b32 s26, s23")
        a("s_lshl_b32 s24, s23, 6")
        a(f"s_mov_b32 s25, {WS + SOFF[kind]}")
    a(f"s_mul_i32 s28, s22, {ns*16*st}")
    a("s_add_u32 s24, s24, s28")
    a(f"s_mul_i32 s28, s22, {(ns//2)*bs}")
    a("s_add_u32 s25, s25, s28")
    a(f"s_mul_i32 s28, s22, {ns*1024}")
    a("s_mov_b32 m0, s28")
    a("v_lshrrev_b32 v2, 2, v1")
    a(f"s_mov_b32 s29, {st}")
    a("v_mul_lo_u32 v2, v2, s29")
    a("v_and_b32 v3, 3, v1")
    a("v_lshlrev_b32 v3, 4, v3")
    a("v_add_u32 v2, v2, v3")
    for j in range(ns):
        a("buffer_load_dwordx4 v2, s[8:11], s24 offen lds")
        if j < ns - 1:
            a(f"s_add_u32 s24, s24, {16*st}")
            a("s_add_u32 m0, m0, 0x400")
    a("v_and_b32 v4, 15, v1")
    a("v_lshrrev_b32 v4, 2, v4")
    a("v_lshlrev_b32 v4, 6, v4")
    a("v_and_b32 v6, 16, v1")
    a("v_lshlrev_b32 v6, 1, v6")
    a("v_add_u32 v4, v4, v6")
    a("v_and_b32 v6, 3, v1")
    a("v_lshlrev_b32 v6, 3, v6")
    a("v_add_u32 v4, v4, v6")
    a("v_add_u32 v4, s28, v4")
    a("v_lshrrev_b32 v5, 5, v1")
    if kind != 'wo':
        a("v_lshlrev_b32 v6, 9, v5")
        a("v_add_u32 v4, v4, v6")
        rd = lambda j, b: (4, j*1024 + b*256)
    else:
        OG = [(0,1),(2,3),(4,9),(5,6),(7,8)]
        def rel(j, hh, b):
            c = 2*j + hh
            return 40*(c//5) + 4*OG[c % 5][b]
        diffs = sorted({rel(j,1,b) - rel(j,0,b) for j in range(10) for b in range(2)})
        reg = {}
        for n, d in enumerate(diffs):
            r = 64 + n
            reg[d] = r
            a(f"v_mul_i32_i24 v{r}, {d*64}, v5")
            a(f"v_add_u32 v{r}, v4, v{r}")
        rd = lambda j, b: (reg[rel(j,1,b) - rel(j,0,b)], rel(j,0,b)*64)
    a("v_and_b32 v8, 31, v1")
    a("s_lshl_b32 s31, s26, 5")
    if kind == 'qkv':
        a("s_cmp_ge_u32 s23, 40")
        a("s_cbranch_scc1 P0_qkv_noperm")
        a("s_cmp_ge_u32 s23, 20")
        a("s_cselect_b32 s30, 20, 0")
        a("s_sub_u32 s31, s23, s30")
        a("s_lshl_b32 s31, s31, 5")
        a("v_add_u32 v8, s31, v8")
        a("v_mul_u32_u24 v9, 1639, v8")
        a("v_lshrrev_b32 v9, 16, v9")
        a("v_mul_u32_u24 v9, 40, v9")
        a("v_sub_u32 v9, v8, v9")
        a("v_lshrrev_b32 v9, 2, v9")
        a("v_add_u32 v10, 3, v9")
        a("v_lshrrev_b32 v10, 3, v10")
        a("v_add_u32 v9, 7, v9")
        a("v_lshrrev_b32 v9, 4, v9")
        a("v_mul_u32_u24 v9, 5, v9")
        a("v_sub_u32 v10, v10, v9")
        a("v_lshlrev_b32 v10, 2, v10")
        a("v_add_u32 v8, v8, v10")
        a("s_lshl_b32 s30, s30, 5")
        a("v_add_u32 v8, s30, v8")
        a("v_lshrrev_b32 v11, 4, v8")
        a("v_mul_u32_u24 v9, 6554, v11")
        a("v_lshrrev_b32 v9, 16, v9")
        a("v_mul_u32_u24 v10, 10, v9")
        a("v_sub_u32 v10, v11, v10")
        a("s_branch P0_qkv_j")
        a.lab("P0_qkv_noperm")
        a("s_sub_u32 s31, s31, 1280")
        a("v_add_u32 v8, s31, v8")
        a("v_lshrrev_b32 v11, 4, v8")
        a("v_mul_u32_u24 v9, 13108, v11")
        a("v_lshrrev_b32 v9, 16, v9")
        a("v_mul_u32_u24 v10, 5, v9")
        a("v_sub_u32 v10, v11, v10")
        a("v_add_u32 v10, 10, v10")
        a.lab("P0_qkv_j")
    else:
        a("v_add_u32 v8, s31, v8")
        mul, per = (1366, 12) if kind == 'w1' else (3277, 5)
        a(f"v_mul_u32_u24 v9, {mul}, v8")
        a("v_lshrrev_b32 v9, 18, v9")
        a("v_lshrrev_b32 v11, 4, v8")
        a(f"v_mul_u32_u24 v10, {per}, v9")
        a("v_sub_u32 v10, v11, v10")
    a(f"v_mul_u32_u24 v7, {STREAM}, v9")
    a("v_lshlrev_b32 v11, 10, v10")
    a("v_add_u32 v7, v7, v11")
    a("v_lshlrev_b32 v11, 8, v5")
    a("v_add_u32 v7, v7, v11")
    a("v_and_b32 v11, 15, v8")
    a("v_lshlrev_b32 v12, 4, v11")
    a("v_add_u32 v7, v7, v12")
    if kind == 'qkv':
        a("v_mul_u32_u24 v8, 240, v9")
        a("v_lshlrev_b32 v10, 4, v10")
        a("v_add_u32 v8, v8, v10")
        a("v_add_u32 v8, v8, v11")
    stamp(a, 2)
    a("s_waitcnt vmcnt(0)")
    stamp(a, 3)
    a("s_barrier")
    for j in range(ns):
        for b in range(2):
            r, off = rd(j, b)
            a(f"ds_read_b64_tr_b16 v[{16+4*j+2*b}:{16+4*j+2*b+1}], v{r} offset:{off}")
    if cfg['cs'] is not None:
        a("s_mov_b32 s30, 0x3f803f80")
        a("v_mov_b32 v12, 0")
        a("v_mov_b32 v13, 0")
    for j in range(ns):
        a(f"s_waitcnt lgkmcnt({min(15, 2*(ns-1-j))})")
        a(f"buffer_store_dwordx4 v[{16+4*j}:{16+4*j+3}], v7, s[4:7], s25 offen")
        if j < ns - 1: a(f"s_add_u32 s25, s25, {512 if j % 2 == 0 else bs - 512}")
        if cfg['cs'] is not None:
            a(f"v_dot2c_f32_bf16 v12, s30, v{16+4*j}")
            a(f"v_dot2c_f32_bf16 v13, s30, v{16+4*j+1}")
            a(f"v_dot2c_f32_bf16 v12, s30, v{16+4*j+2}")
            a(f"v_dot2c_f32_bf16 v13, s30, v{16+4*j+3}")
    stamp(a, 4)
    if cfg['cs'] is None: stamp_flush(a, 'p0', 5, 22)
    if cfg['cs'] is not None:
        a("v_add_f32 v12, v12, v13")
        a("v_lshlrev_b32 v14, 2, v0")
        a("ds_write_b32 v14, v12 offset:49152")
        a("s_waitcnt lgkmcnt(0)")
        a("s_barrier")
        a("s_cmp_lg_u32 s22, 0")
        a(f"s_cbranch_scc1 P0_end")
        a("v_and_b32 v14, 31, v1")
        a("v_lshlrev_b32 v14, 2, v14")
        for q in range(8):
            a(f"ds_read_b32 v{16+q}, v14 offset:{49152 + q*128}")
        a("s_waitcnt lgkmcnt(0)")
        for q in range(1, 8):
            a(f"v_add_f32 v16, v16, v{16+q}")
        a("v_lshlrev_b32 v8, 2, v8")
        a(f"s_mov_b32 s25, {cfg['cs']}")
        a("s_mov_b32 exec_hi, 0")
        a("buffer_store_dword v16, v8, s[4:7], s25 offen")
        a("s_mov_b32 exec_hi, -1")
        stamp_flush(a, 'p0', 5, 22)
    a("s_endpgm")

def p0_x(a):
    a.lab("P0_x")
    a("s_sub_u32 s23, s2, 168")
    srd(a, 8, 12, 2048*1280)
    a(f"s_mul_i32 s24, s23, {32*1280}")
    a("v_and_b32 v2, 31, v1")
    a("v_lshrrev_b32 v5, 5, v1")
    a("v_mul_u32_u24 v3, 1280, v2")
    a("v_lshlrev_b32 v4, 4, v5")
    a("v_add_u32 v3, v3, v4")
    a("s_lshl_b32 s25, s22, 5")
    a("v_add_u32 v3, s25, v3")
    for j in range(10):
        a(f"buffer_load_dwordx4 v[{16+4*j}:{16+4*j+3}], v3, s[8:11], s24 offen offset:{j*128}")
    a("v_lshrrev_b32 v6, 4, v2")
    a(f"v_mul_u32_u24 v7, {FS640}, v6")
    a("v_lshlrev_b32 v8, 8, v5")
    a("v_add_u32 v7, v7, v8")
    a("v_and_b32 v9, 15, v2")
    a("v_lshlrev_b32 v9, 4, v9")
    a("v_add_u32 v7, v7, v9")
    a("s_lshl_b32 s25, s22, 9")
    a("s_add_u32 s25, s25, s24")
    a(f"s_add_u32 s25, s25, {XA0}")
    a("v_mov_b32 v12, 0")
    a("v_mov_b32 v13, 0")
    a("s_mov_b32 s30, 0x3f803f80")
    for j in range(10):
        a(f"s_waitcnt vmcnt(9)")
        a(f"buffer_store_dwordx4 v[{16+4*j}:{16+4*j+3}], v7, s[4:7], s25 offen")
        if j < 9: a("s_add_u32 s25, s25, 0x800")
        for q in range(4):
            a(f"v_dot2c_f32_bf16 v12, s30, v{16+4*j+q}")
        for q in range(4):
            a(f"v_dot2c_f32_bf16 v13, v{16+4*j+q}, v{16+4*j+q}")
    a("v_lshlrev_b32 v8, 10, v6")
    a("v_add_u32 v8, v8, v9")
    a("v_lshlrev_b32 v10, 3, v5")
    a("v_add_u32 v8, v8, v10")
    a("s_lshl_b32 s25, s23, 11")
    a("s_lshl_b32 s26, s22, 8")
    a("s_add_u32 s25, s25, s26")
    a(f"s_add_u32 s25, s25, {ST0}")
    a("v_mov_b32 v14, v12")
    a("v_mov_b32 v15, v13")
    a("buffer_store_dwordx2 v[14:15], v8, s[4:7], s25 offen")
    stamp(a, 2); stamp(a, 3); stamp(a, 4)
    stamp_flush(a, 'p0', 5, 22)
    a("s_endpgm")

def p0_ones(a):
    a.lab("P0_ones")
    a("s_sub_u32 s23, s2, 232")
    a("s_lshl_b32 s24, s23, 12")
    a(f"s_add_u32 s24, s24, {FLAGS}")
    a("v_lshlrev_b32 v3, 4, v0")
    a("v_mov_b32 v8, 0"); a("v_mov_b32 v9, 0"); a("v_mov_b32 v10, 0"); a("v_mov_b32 v11, 0")
    a("buffer_store_dwordx4 v[8:11], v3, s[4:7], s24 offen")
    a("s_lshl_b32 s23, s23, 10")
    a("v_add_u32 v2, s23, v0")
    a("v_mul_u32_u24 v2, 336, v2")
    a("v_mov_b32 v4, 0x3f803f80")
    a("v_mov_b32 v5, v4")
    a("v_mov_b32 v6, v4")
    a("v_mov_b32 v7, v4")
    a(f"s_mov_b32 s25, {VB + 320}")
    for j in range(4):
        a("buffer_store_dwordx4 v[4:7], v2, s[4:7], s25 offen")
        if j < 3: a(f"s_add_u32 s25, s25, {256*336}")
    a("s_endpgm")

def gen_p0():
    a = Asm()
    a("s_cmp_ge_u32 s2, 240")
    a("s_cbranch_scc1 P0_end")
    stamp_rt(a, 0); stamp(a, 1)
    a("s_load_dwordx4 s[12:15], s[0:1], 0")
    a("s_load_dwordx2 s[16:17], s[0:1], 16")
    a("s_load_dwordx2 s[18:19], s[0:1], 32")
    a("s_load_dwordx2 s[20:21], s[0:1], 48")
    a("s_load_dwordx2 s[4:5], s[0:1], 80")
    a("v_lshrrev_b32 v1, 6, v0")
    a("v_readfirstlane_b32 s22, v1")
    a("v_and_b32 v1, 63, v0")
    a(f"s_mov_b32 s6, {hex(WS_BYTES)}")
    a("s_mov_b32 s7, 0x00020000")
    a("s_waitcnt lgkmcnt(0)")
    a("s_cmp_lt_u32 s2, 60")
    a("s_cbranch_scc1 P0_qkv")
    a("s_cmp_lt_u32 s2, 80")
    a("s_cbranch_scc1 P0_wo")
    a("s_cmp_lt_u32 s2, 128")
    a("s_cbranch_scc1 P0_w1")
    a("s_cmp_lt_u32 s2, 168")
    a("s_cbranch_scc1 P0_w2")
    a("s_cmp_lt_u32 s2, 232")
    a("s_cbranch_scc1 P0_x")
    p0_ones(a)
    p0_x(a)
    for k in ('qkv', 'wo', 'w1', 'w2'):
        p0_weight(a, k)
    a.lab("P0_end")
    a("s_endpgm")
    return a
```

```python
import sys, os
sys.path.insert(0, os.path.dirname(os.path.abspath(__file__)))
from common import *
import k_p0, k_att, k_chain

HEADER = open("cdna_kernels/" + NAME + ".s.ref").read().split("; Override launch")[0]

def build(out):
    main = NAME + "_kernel"
    K = {}
    K[main] = (k_p0.gen_p0(), 240, 256, 50176, 72)
    K["c0_kernel"] = (k_chain.gen_chain('c0'), 256, 512, k_chain.CH_LDS, 256)
    K["att_kernel"] = (k_att.gen_att(), 256, 256, 0, 172)
    K["c1_kernel"] = (k_chain.gen_chain('c1'), 256, 512, k_chain.CH_LDS, 256)
    K["c2_kernel"] = (k_chain.gen_chain('c2'), 256, 512, k_chain.CH_LDS, 256)
    order = [main, "c0_kernel", "att_kernel", "c1_kernel", "att_kernel", "c2_kernel"]
    if os.environ.get("ORDER"):
        m = {'p0': main}
        order = [m.get(x, x + "_kernel") for x in os.environ["ORDER"].split(",")]
    t = HEADER
    for n in order:
        _, g, b, l, _ = K[n]
        t += f"; @launch kernel={n} grid=({g},1,1) block=({b},1,1) lds={l}\n"
    t += '.amdgcn_target "amdgcn-amd-amdhsa--gfx950"\n.text\n'
    for n, (a, g, b, l, v) in K.items():
        t += kernel_text(n, a)
    t += '.section .rodata,"a"\n'
    for n, (a, g, b, l, v) in K.items():
        t += ".p2align 6\n" + descriptor(n, v)
    open(out, "w").write(t)
    print("wrote", out, len(t), "bytes")

if __name__ == "__main__":
    out = sys.argv[1] if len(sys.argv) > 1 else "new.s"
    build(out)
```
